```python
import torch

def _softmax(x, axis=-1):
    return torch.softmax(x, dim=axis)
def _gelu(x):
    return torch.nn.functional.gelu(x, approximate="tanh")
def _silu(x):
    return torch.nn.functional.silu(x)
def _sigmoid(x):
    return torch.sigmoid(x)
def _layernorm(x, axis=-1, eps=1e-5):
    m = x.mean(dim=axis, keepdim=True)
    v = x.var(dim=axis, keepdim=True, unbiased=False)
    return (x - m) / torch.sqrt(v + eps)
def _scatter_add(tgt, idx, src, axis=0):
    return tgt.clone().index_add_(axis, idx, src)
def _segment_sum(src, seg, n):
    out = torch.zeros((n,) + src.shape[1:], dtype=src.dtype)
    return out.index_add_(0, seg, src)
def _pad(x, pw):
    flat = tuple(v for pair in reversed(pw) for v in pair)
    return torch.nn.functional.pad(x, flat)

kernel_name = 'gather_scatter__molecular_angular_gemnet__graph'

def setup_inputs():

    _w = (lambda a: (lambda t: t.to(torch.bfloat16) if t.is_floating_point() else t)(torch.as_tensor(a)))
    N, deg, De, L = 10000, 16, 16, 2
    E = N * deg
    T = E * deg
    NR = 8
    dist = torch.rand(E).to(float)
    angle = (torch.rand(T) * torch.pi).to(float)
    centers = torch.linspace(0.0, 1.0, NR).to(float)
    ang_freq = torch.arange(1, L + 1).to(float)
    return {
        "m": _w((lambda *s: torch.randn(*s, dtype=torch.bfloat16) * 0.05)(E, De)),
        "idx_in": _w((lambda lo, hi, *s: torch.randint(lo, hi, s))(0, E, T).to(torch.int64)),
        "idx_out": _w((lambda lo, hi, *s: torch.randint(lo, hi, s))(0, E, T).to(torch.int64)),
        "dist": _w(dist),
        "angle": _w(angle),
        "centers": _w(centers),
        "ang_freq": _w(ang_freq),
        "w_rbf": _w((lambda *s: torch.randn(*s, dtype=torch.bfloat16) * 0.2)(NR, De)),
        "w_sbf": _w((lambda *s: torch.randn(*s, dtype=torch.bfloat16) * 0.2)(NR * L, De)),
        "w_down": _w((lambda *s: torch.randn(*s, dtype=torch.bfloat16) * 0.2)(De, De)),
        "w_up": _w((lambda *s: torch.randn(*s, dtype=torch.bfloat16) * 0.2)(De, De)),
    }

def reference(m, idx_in, idx_out, dist, angle, centers, ang_freq, w_rbf, w_sbf, w_down, w_up):
    E, De = m.shape[0], m.shape[1]
    NR = centers.shape[0]
    L = ang_freq.shape[0]
    rbf = torch.exp(-10.0 * (dist[:, None] - centers[None, :]) ** 2)
    cbf = torch.cos(ang_freq[None, :] * angle[:, None])
    rbf_t = rbf[idx_out]
    sbf = torch.reshape(rbf_t[:, :, None] * cbf[:, None, :], (-1, NR * L))
    x = (m[idx_in] @ w_down) * (sbf @ w_sbf)
    agg = _segment_sum(x, idx_out, E)
    return m + (agg @ w_up) * (rbf @ w_rbf)
```

```python
import sys, struct
P = dict(D=4, SYNC=0, NQ=4, PF=1, ST="", LD="", PFN=1)
for a in sys.argv[2:]:
    k, v = a.split("=")
    P[k] = int(v) if v.lstrip("-").isdigit() else v
out = []
def e(s=""): out.append(s)
NAME = "gather_scatter__molecular_angular_gemnet__graph"
E, T = 160000, 2560000
NCH, CH = 250, 10240
NB, BE = 250, 640
CSTR = 83968
WS_DESC = NCH * CSTR
WS_W = WS_DESC + NCH * 1024
WS_SZ = WS_W + 5 * 1024
M640 = (2**32 + 639) // 640
NQ = P["NQ"]
MQ = (2**32 * NQ) // E
assert (E - 1) * MQ >> 32 == NQ - 1 and MQ < 2**24
TRASH = 2560
hdr = open("cdna_kernels/%s.s.ref" % NAME).read().split("; Override")[0]
e(hdr.rstrip())
L1 = CSTR + 2048 + 16
CAPW = 1280
RB = 10752
L2 = RB + 16 + 10 * CAPW * 8
e("; @launch kernel=part_kernel grid=(251,1,1) block=(512,1,1) lds=%d" % L1)
e("; @launch kernel=gath_kernel grid=(250,1,1) block=(640,1,1) lds=%d" % L2)
e('.amdgcn_target "amdgcn-amd-amdhsa--gfx950"')
e(".text")
def srd(d, b, size, stride=0):
    e("s_mov_b32 s%d, s%d" % (d, b))
    if stride: e("s_or_b32 s%d, s%d, 0x%x" % (d + 1, b + 1, stride << 16))
    else: e("s_mov_b32 s%d, s%d" % (d + 1, b + 1))
    e("s_mov_b32 s%d, %d" % (d + 2, size))
    e("s_mov_b32 s%d, 0x00020000" % (d + 3))
def scan(v):
    for sh in (1, 2, 4, 8):
        e("s_nop 1")
        e("v_add_u32_dpp v%d, v%d, v%d row_shr:%d row_mask:0xf bank_mask:0xf bound_ctrl:0" % (v, v, v, sh))
    e("s_nop 1")
    e("v_add_u32_dpp v%d, v%d, v%d row_bcast:15 row_mask:0xa bank_mask:0xf" % (v, v, v))
    e("s_nop 1")
    e("v_add_u32_dpp v%d, v%d, v%d row_bcast:31 row_mask:0xc bank_mask:0xf" % (v, v, v))
def kstart(n):
    e(".globl %s" % n); e(".p2align 8"); e(".type %s,@function" % n); e("%s:" % n)

HIST, BASE, STG = 0, 1024, 2064
kstart("part_kernel")
e("s_cmp_ge_u32 s2, 251"); e("s_cbranch_scc1 P_EXIT")
e("s_cmp_eq_u32 s2, 250"); e("s_cbranch_scc1 P_PREP")
e("s_load_dwordx4 s[4:7], s[0:1], 8")
e("s_load_dwordx2 s[8:9], s[0:1], 32")
e("s_load_dwordx2 s[10:11], s[0:1], 104")
e("v_lshlrev_b32 v1, 4, v0"); e("v_lshlrev_b32 v2, 3, v0"); e("v_lshlrev_b32 v3, 2, v0")
e("v_mov_b32 v4, 0"); e("v_mov_b32 v5, 1")
e("ds_write_b32 v3, v4")
e("s_mul_i32 s28, s2, %d" % (CH * 4)); e("s_mul_i32 s29, s2, %d" % (CH * 2))
e("s_waitcnt lgkmcnt(0)")
srd(12, 4, T * 4); srd(16, 6, T * 4); srd(20, 8, T * 2); srd(24, 10, WS_SZ)
VO, VI, VA, VR = 8, 28, 48, 60
VB = 80
LD = P["LD"]
for g in range(5):
    e("s_add_u32 s30, s28, %d" % (g * 8192))
    e("buffer_load_dwordx4 v[%d:%d], v1, s[16:19], s30 offen %s" % (VO + 4 * g, VO + 4 * g + 3, LD))
for g in range(5):
    e("s_add_u32 s30, s29, %d" % (g * 4096))
    e("buffer_load_dwordx2 v[%d:%d], v2, s[20:23], s30 offen %s" % (VA + 2 * g, VA + 2 * g + 1, LD))
    e("s_add_u32 s30, s28, %d" % (g * 8192))
    e("buffer_load_dwordx4 v[%d:%d], v1, s[12:15], s30 offen %s" % (VI + 4 * g, VI + 4 * g + 3, LD))
e("s_mov_b32 s31, %d" % M640); e("s_mov_b32 s32, %d" % MQ); e("s_mov_b32 s33, -640")
e("s_mov_b32 s34, 0xffff0000")
e("s_barrier")
for g in range(5):
    e("s_waitcnt vmcnt(%d)" % (14 - g))
    for j in range(4):
        i = 4 * g + j
        e("v_mul_hi_u32_u24 v%d, s31, v%d" % (VB + i, VO + i))
        e("v_lshlrev_b32 v%d, 2, v%d" % (VB + i, VB + i))
        e("ds_add_rtn_u32 v%d, v%d, v5" % (VR + i, VB + i))
e("v_and_b32 v6, 63, v0"); e("v_lshlrev_b32 v6, 4, v6")
e("s_waitcnt lgkmcnt(0)"); e("s_barrier")
e("ds_read_b128 v[100:103], v6")
e("s_waitcnt lgkmcnt(0)")
for j in range(4):
    e("v_add_u32 v%d, 1, v%d" % (104 + j, 100 + j)); e("v_lshrrev_b32 v%d, 1, v%d" % (104 + j, 104 + j))
e("v_add_u32 v109, v104, v105"); e("v_add_u32 v110, v109, v106"); e("v_add_u32 v7, v110, v107")
e("v_mov_b32 v111, v7")
scan(7)
e("v_sub_u32 v108, v7, v111")
e("v_add_u32 v111, v108, v110"); e("v_add_u32 v110, v108, v109"); e("v_add_u32 v109, v108, v104")
for j in range(4): e("v_lshlrev_b32 v%d, 4, v%d" % (112 + j, 108 + j))
e("ds_write_b128 v6, v[112:115] offset:%d" % BASE)
e("v_readfirstlane_b32 s35, v0")
e("s_cmp_lg_u32 s35, 0"); e("s_cbranch_scc1 P_NOTW0")
for j in range(4): e("v_lshl_or_b32 v%d, v%d, 16, v%d" % (116 + j, 104 + j, 108 + j))
e("s_lshl_b32 s30, s2, 10"); e("s_add_u32 s30, s30, %d" % WS_DESC)
e("buffer_store_dwordx4 v[116:119], v6, s[24:27], s30 offen")
e("v_mov_b32 v120, %d" % TRASH); e("v_mov_b32 v121, -16")
for j in range(4):
    e("v_and_b32 v122, 1, v%d" % (100 + j)); e("v_cmp_eq_u32 vcc, 1, v122")
    e("v_lshl_add_u32 v122, v%d, 3, v%d" % (100 + j, 112 + j)); e("s_nop 0")
    e("v_cndmask_b32 v122, v121, v122, vcc"); e("v_add_u32 v122, %d, v122" % STG)
    e("ds_write_b32 v122, v120")
e("P_NOTW0:")
e("s_waitcnt lgkmcnt(0)")
for i in range(20): e("ds_read_b32 v%d, v%d offset:%d" % (100 + i, VB + i, BASE))
for g in range(5):
    e("s_waitcnt vmcnt(%d)" % (8 - 2 * g))
    for j in range(4):
        i = 4 * g + j
        a = VA + 2 * g + j // 2
        t = 120 + 2 * j
        if j % 2 == 0: e("v_lshlrev_b32 v%d, 16, v%d" % (t, a))
        else: e("v_and_b32 v%d, s34, v%d" % (t, a))
        e("v_mul_f32 v%d, 0.15915494, v%d" % (t, t))
        e("v_fract_f32 v%d, v%d" % (t, t))
        e("v_add_f32 v%d, v%d, v%d" % (t + 1, t, t))
        e("v_cos_f32 v%d, v%d" % (t, t)); e("v_cos_f32 v%d, v%d" % (t + 1, t + 1))
        e("v_mul_hi_u32_u24 v6, s32, v%d" % (VI + i))
        e("v_cvt_pk_bf16_f32 v%d, v%d, v%d" % (t + 1, t, t + 1))
        e("v_lshl_add_u32 v6, v%d, 2, v6" % (VO + i))
        e("v_mad_i32_i24 v6, v%d, s33, v6" % (VB + i))
        e("v_lshl_add_u32 v%d, v%d, 14, v6" % (t, VI + i))
        if g == 0 and j == 0: e("s_waitcnt lgkmcnt(0)")
        e("v_lshl_add_u32 v%d, v%d, 3, v%d" % (VR + i, VR + i, 100 + i))
        e("ds_write_b64 v%d, v[%d:%d] offset:%d" % (VR + i, t, t + 1, STG))
e("s_waitcnt lgkmcnt(0)"); e("s_barrier")
e("v_add_u32 v2, %d, v1" % (5 * 8192))
for g in range(10):
    e("ds_read_b128 v[%d:%d], v%d offset:%d" % (8 + 4 * g, 11 + 4 * g, 1 if g < 5 else 2, STG + (g % 5) * 8192))
e("s_mul_i32 s28, s2, %d" % CSTR)
for g in range(10):
    e("s_add_u32 s30, s28, %d" % (g * 8192))
    e("s_waitcnt lgkmcnt(%d)" % (9 - g))
    e("buffer_store_dwordx4 v[%d:%d], v1, s[24:27], s30 offen %s" % (8 + 4 * g, 11 + 4 * g, P["ST"]))
e("s_cmp_ge_u32 s35, 128"); e("s_cbranch_scc1 P_EXIT")
e("ds_read_b128 v[48:51], v2 offset:%d" % (STG + 5 * 8192))
e("s_add_u32 s30, s28, %d" % (10 * 8192))
e("s_waitcnt lgkmcnt(0)")
e("buffer_store_dwordx4 v[48:51], v1, s[24:27], s30 offen %s" % P["ST"])
e("P_EXIT:"); e("s_endpgm")
e("P_PREP:")
e("v_readfirstlane_b32 s35, v0"); e("s_cmp_lg_u32 s35, 0"); e("s_cbranch_scc1 P_EXIT")
e("s_load_dwordx8 s[4:11], s[0:1], 56")
e("s_load_dwordx2 s[36:37], s[0:1], 104")
e("v_and_b32 v1, 3, v0"); e("v_bfe_u32 v2, v0, 2, 1"); e("v_lshl_add_u32 v1, v2, 3, v1")
e("v_bfe_u32 v2, v0, 3, 1"); e("v_lshl_add_u32 v1, v2, 2, v1"); e("v_lshlrev_b32 v1, 1, v1")
e("v_bfe_u32 v2, v0, 4, 1"); e("v_lshrrev_b32 v3, 5, v0")
e("v_xor_b32 v4, 1, v2")
e("v_lshl_add_u32 v5, v3, 8, v1")
e("v_lshl_add_u32 v10, v2, 20, v5")
e("v_lshl_add_u32 v11, v4, 20, v5")
e("v_lshl_add_u32 v12, v2, 5, v1"); e("v_lshl_add_u32 v12, v3, 20, v12")
e("s_waitcnt lgkmcnt(0)")
srd(12, 4, 256); srd(16, 6, 512); srd(20, 8, 512); srd(24, 10, 512); srd(28, 36, WS_SZ)
imgs = [(10, 20, 32), (11, 20, 32), (12, 16, 64), (10, 24, 32), (11, 12, 32)]
for n, (va, s, st) in enumerate(imgs):
    for j in range(8):
        e("buffer_load_ushort v%d, v%d, s[%d:%d], 0 offen offset:%d" % (16 + 8 * n + j, va, s, s + 3, j * st))
e("v_lshlrev_b32 v1, 4, v0"); e("s_mov_b32 s3, %d" % WS_W)
e("s_waitcnt vmcnt(0)")
for n in range(5):
    for j in range(4):
        e("v_lshl_or_b32 v%d, v%d, 16, v%d" % (60 + 4 * n + j, 17 + 8 * n + 2 * j, 16 + 8 * n + 2 * j))
for n in range(5):
    e("buffer_store_dwordx4 v[%d:%d], v1, s[28:31], s3 offen" % (60 + 4 * n, 63 + 4 * n))
    e("s_add_u32 s3, s3, 1024")
e("s_endpgm")

D = P["D"]
ACC = 16; ROW = 48; CW = ROW + 8 * D; REC = (CW + D + 1) // 2 * 2; HD = REC + 4
UN = HD + 4
LNK = 48
NV2 = max(UN + 8, 132)
MORE = 10496
kstart("gath_kernel")
e("s_cmp_ge_u32 s2, 250"); e("s_cbranch_scc1 G_EXIT")
e("s_load_dwordx2 s[4:5], s[0:1], 0")
e("s_load_dwordx2 s[6:7], s[0:1], 24")
e("s_load_dwordx2 s[8:9], s[0:1], 88")
e("s_load_dwordx2 s[10:11], s[0:1], 104")
e("s_load_dwordx2 s[36:37], s[0:1], 40")
e("v_lshrrev_b32 v2, 6, v0"); e("v_and_b32 v4, 63, v0")
e("v_readfirstlane_b32 s3, v2")
e("v_lshlrev_b32 v1, 4, v4")
e("v_mul_u32_u24 v2, 25, v2"); e("v_add_u32 v2, v2, v4")
e("v_lshlrev_b32 v3, 10, v2")
e("s_lshl_b32 s30, s2, 2"); e("s_add_u32 s30, s30, %d" % WS_DESC)
e("s_waitcnt lgkmcnt(0)")
srd(24, 10, WS_SZ)
e("s_mov_b64 exec, 0x1ffffff")
e("buffer_load_dword v3, v3, s[24:27], s30 offen")
e("s_mov_b64 exec, -1")
e("s_load_dwordx4 s[40:43], s[36:37], 0")
srd(12, 4, E, stride=32); srd(16, 4, E * 32); srd(20, 6, E * 2); srd(32, 8, E * 32)
e("s_mov_b32 s38, %d" % CSTR)
e("v_mul_lo_u32 v2, v2, s38")
for i in range(32): e("v_mov_b32 v%d, 0" % (ACC + i))
e("v_mov_b32 v5, 0xffffc000"); e("v_mov_b32 v6, %d" % RB)
e("ds_write2_b32 v6, v5, v16 offset0:0 offset1:1")
e("v_mov_b32 v6, %d" % MORE); e("ds_write_b32 v6, v16")
e("s_mov_b32 s44, 0")
e("s_mov_b32 s45, 0")
e("s_mov_b32 s46, 0")
e("s_mov_b32 s52, 0xffff0000"); e("s_movk_i32 s53, 0x3fff"); e("s_mov_b32 s54, 0x1fff8")
e("s_mul_i32 s55, s3, %d" % (CAPW * 8)); e("s_add_u32 s55, s55, %d" % (RB + 16))
e("s_waitcnt vmcnt(0)")
e("v_and_b32 v5, 0xffff, v3"); e("v_lshl_add_u32 v2, v5, 4, v2"); e("v_lshrrev_b32 v3, 16, v3")
e("G_ROUND:")
e("v_lshlrev_b32 v5, 4, v0")
for i in range(4): e("v_mov_b32 v%d, 0" % (8 + i))
e("ds_write_b128 v5, v[8:11]")
e("s_movk_i32 s47, %d" % (CAPW // 2))
e("s_mov_b32 s48, s55")
e("G_FILL:")
e("v_readlane_b32 s49, v3, s45"); e("v_readlane_b32 s50, v2, s45")
e("s_sub_u32 s49, s49, s46"); e("s_lshl_b32 s51, s46, 4"); e("s_add_u32 s50, s50, s51")
e("s_min_u32 s51, s49, s47"); e("s_min_u32 s51, s51, 63")
e("s_mov_b32 m0, s48")
e("s_bfm_b64 exec, s51, 0")
e("s_cbranch_execz G_F1")
e("buffer_load_dwordx4 v1, s[24:27], s50 offen lds")
e("G_F1:")
e("s_sub_u32 s47, s47, s51"); e("s_add_u32 s46, s46, s51"); e("s_lshl_b32 s50, s51, 4"); e("s_add_u32 s48, s48, s50")
e("s_cmp_lg_u32 s51, s49"); e("s_cbranch_scc1 G_F2")
e("s_mov_b32 s46, 0"); e("s_add_u32 s45, s45, 1")
e("s_cmp_lt_u32 s45, 25"); e("s_cbranch_scc1 G_FILL")
e("s_branch G_F3")
e("G_F2:")
e("s_cmp_lg_u32 s47, 0"); e("s_cbranch_scc1 G_FILL")
e("G_F3:")
e("s_mov_b64 exec, -1")
NAFT = 0
if P["PF"]:
    e("s_lshr_b32 s30, s2, 3"); e("s_mul_i32 s30, s30, %d" % (640 * 128 * P["PFN"]))
    e("v_lshlrev_b32 v5, 7, v0")
    for k in range(P["PFN"]):
        e("buffer_load_dword v12, v5, s[16:19], s30 offen"); NAFT += 1
        e("s_add_u32 s30, s30, %d" % (640 * 128))
e("s_sub_u32 s49, %d, s47" % (CAPW // 2))
e("s_add_u32 s50, s49, 63"); e("s_lshr_b32 s50, s50, 6")
e("s_sub_u32 s51, 0, s49"); e("s_and_b32 s51, s51, 63")
e("v_add_u32 v8, %d, v4" % TRASH); e("v_add_u32 v5, s48, v1")
e("s_bfm_b64 exec, s51, 0")
e("ds_write2_b32 v5, v8, v8 offset0:0 offset1:2")
e("s_mov_b64 exec, -1")
e("s_waitcnt lgkmcnt(0)"); e("s_barrier")
e("s_cmp_ge_u32 s45, 25"); e("s_cbranch_scc1 G_NOMORE")
e("s_add_u32 s30, s44, 1"); e("v_mov_b32 v5, s30"); e("v_mov_b32 v6, %d" % MORE); e("ds_max_u32 v6, v5")
e("G_NOMORE:")
e("v_add_u32 v5, s55, v1")
e("v_subrev_u32 v6, %d, v5" % RB); e("v_lshrrev_b32 v6, 3, v6")
e("s_waitcnt vmcnt(%d)" % NAFT)
for i in range(10): e("ds_read_b128 v[%d:%d], v5 offset:%d" % (LNK + 4 * i, LNK + 4 * i + 3, i * 1024))
for i in range(10):
    r = LNK + 4 * i
    e("s_cmp_le_u32 s50, %d" % i); e("s_cbranch_scc1 G_L1")
    e("s_waitcnt lgkmcnt(%d)" % min(15, 9 - i + 2 * i))
    e("v_and_b32 v8, s53, v%d" % r); e("v_and_b32 v9, s53, v%d" % (r + 2))
    e("v_lshlrev_b32 v8, 2, v8"); e("v_lshlrev_b32 v9, 2, v9"); e("v_add_u32 v7, 1, v6")
    e("ds_wrxchg_rtn_b32 v%d, v8, v6" % (r + 1)); e("ds_wrxchg_rtn_b32 v%d, v9, v7" % (r + 3))
    e("v_add_u32 v6, 128, v6")
e("G_L1:")
e("s_waitcnt lgkmcnt(0)")
for i in range(10):
    r = LNK + 4 * i
    e("s_cmp_le_u32 s50, %d" % i); e("s_cbranch_scc1 G_L2")
    e("v_bfi_b32 v%d, s53, v%d, v%d" % (r, r + 1, r)); e("v_bfi_b32 v%d, s53, v%d, v%d" % (r + 2, r + 3, r + 2))
    e("ds_write2_b32 v5, v%d, v%d offset0:0 offset1:2" % (r, r + 2))
    e("v_add_u32 v5, 1024, v5")
e("G_L2:")
e("v_lshlrev_b32 v5, 4, v0"); e("v_mov_b32 v6, %d" % MORE)
e("s_waitcnt lgkmcnt(0)"); e("s_barrier")
e("ds_read_b128 v[%d:%d], v5" % (HD, HD + 3)); e("ds_read_b32 v6, v6")
e("s_waitcnt lgkmcnt(0)")
e("v_readfirstlane_b32 s56, v6")
for i in range(4): e("v_lshlrev_b32 v%d, 3, v%d" % (HD + i, HD + i))
SYNC = P["SYNC"]
if not SYNC:
    for k in range(NQ - 2, -1, -1):
        e("v_cmp_eq_u32 vcc, 0, v%d" % (HD + k)); e("s_nop 1")
        for j in range(k, NQ - 1): e("v_cndmask_b32 v%d, v%d, v%d, vcc" % (HD + j, HD + j, HD + j + 1))
        e("v_cndmask_b32 v%d, v%d, 0, vcc" % (HD + NQ - 1, HD + NQ - 1))
else:
    e("s_mov_b32 s57, %d" % (NQ - 1))
e("ds_read_b64 v[%d:%d], v%d offset:%d" % (REC, REC + 1, HD, RB))
def consume(k):
    e("v_lshlrev_b32 v%d, 16, v%d" % (UN + 4, CW + k)); e("v_and_b32 v%d, s52, v%d" % (UN + 5, CW + k))
    for j in range(8):
        u = UN + 2 * (j % 2); r = ROW + 8 * k + j
        e("v_lshlrev_b32 v%d, 16, v%d" % (u, r)); e("v_and_b32 v%d, s52, v%d" % (u + 1, r))
        a = ACC + 2 * j
        e("v_pk_fma_f32 v[%d:%d], v[%d:%d], v[%d:%d], v[%d:%d] op_sel_hi:[1,0,1]" % (a, a + 1, u, u + 1, UN + 4, UN + 5, a, a + 1))
        a += 16
        e("v_pk_fma_f32 v[%d:%d], v[%d:%d], v[%d:%d], v[%d:%d] op_sel:[0,1,0]" % (a, a + 1, u, u + 1, UN + 4, UN + 5, a, a + 1))
def chase(k, par, tag):
    r = REC + 2 * par; n = REC + 2 * (par ^ 1)
    e("s_waitcnt lgkmcnt(0)")
    e("v_lshlrev_b32 v%d, 3, v%d" % (HD, r)); e("v_lshrrev_b32 v5, 14, v%d" % r)
    e("v_and_b32 v%d, s54, v%d" % (HD, HD))
    e("buffer_load_dwordx4 v[%d:%d], v5, s[12:15], 0 idxen" % (ROW + 8 * k, ROW + 8 * k + 3))
    e("buffer_load_dwordx4 v[%d:%d], v5, s[12:15], 0 idxen offset:16" % (ROW + 8 * k + 4, ROW + 8 * k + 7))
    if not SYNC:
        e("v_cmp_eq_u32 vcc, 0, v%d" % HD); e("v_mov_b32 v%d, v%d" % (CW + k, r + 1)); e("s_nop 0")
        for j in range(NQ - 1): e("v_cndmask_b32 v%d, v%d, v%d, vcc" % (HD + j, HD + j, HD + j + 1))
        if NQ > 1: e("v_cndmask_b32 v%d, v%d, 0, vcc" % (HD + NQ - 1, HD + NQ - 1))
        e("v_cmp_ne_u32 vcc, 0, v%d" % HD)
        e("ds_read_b64 v[%d:%d], v%d offset:%d" % (n, n + 1, HD, RB))
        e("s_cbranch_vccz G_DR%s" % tag)
    else:
        e("v_mov_b32 v%d, v%d" % (CW + k, r + 1))
        e("G_CK%s:" % tag)
        e("v_cmp_ne_u32 vcc, 0, v%d" % HD)
        e("s_cbranch_vccnz G_GO%s" % tag)
        e("s_cmp_eq_u32 s57, 0"); e("s_cbranch_scc1 G_DR%s" % tag)
        e("s_sub_u32 s57, s57, 1")
        for j in range(NQ - 1): e("v_mov_b32 v%d, v%d" % (HD + j, HD + j + 1))
        e("s_branch G_CK%s" % tag)
        e("G_GO%s:" % tag)
        e("ds_read_b64 v[%d:%d], v%d offset:%d" % (n, n + 1, HD, RB))
assert D % 2 == 0
e("s_movk_i32 s62, 0x2000")
for k in range(D): chase(k, k % 2, "P%d" % k)
e("G_LOOP:")
for k in range(D):
    e("s_waitcnt vmcnt(%d)" % (2 * (D - 1)))
    consume(k)
    chase(k, k % 2, "L%d" % k)
e("s_sub_u32 s62, s62, 1"); e("s_cbranch_scc0 G_LOOP"); e("s_branch G_DRL%d" % (D - 1))
for k in range(D):
    e("G_DRP%d:" % k)
    for j in range(k + 1):
        e("s_waitcnt vmcnt(%d)" % (2 * (k - j))); consume(j)
    e("s_branch G_DONE")
for k in range(D):
    e("G_DRL%d:" % k)
    for j in range(D):
        e("s_waitcnt vmcnt(%d)" % (2 * (D - 1 - j))); consume((k + 1 + j) % D)
    e("s_branch G_DONE")
e("G_DONE:"); e("s_waitcnt lgkmcnt(0)")
e("s_cmp_le_u32 s56, s44"); e("s_cbranch_scc1 G_EPI")
e("s_add_u32 s44, s44, 1"); e("s_waitcnt lgkmcnt(0)"); e("s_barrier")
e("s_cmp_lt_u32 s45, 25"); e("s_cbranch_scc1 G_ROUND")
e("s_mov_b32 s45, 24"); e("s_nop 0"); e("v_readlane_b32 s46, v3, s45"); e("s_branch G_ROUND")
e("G_EPI:")
W = 48; MM = 68; RBF = 76; HI = 84; LO = 100; DD = 116
e("s_mul_i32 s30, s2, 640"); e("s_lshl_b32 s31, s3, 6"); e("s_add_u32 s30, s30, s31")
e("s_lshl_b32 s31, s30, 1"); e("v_lshlrev_b32 v5, 1, v4")
e("buffer_load_ushort v6, v5, s[20:23], s31 offen")
e("s_mov_b32 s31, %d" % WS_W)
for n in range(5):
    e("buffer_load_dwordx4 v[%d:%d], v1, s[24:27], s31 offen offset:%d" % (W + 4 * n, W + 4 * n + 3, 1024 * n if n < 4 else 0))
    if n == 3: e("s_add_u32 s31, s31, 4096")
e("v_and_b32 v7, 31, v4"); e("v_lshlrev_b32 v7, 5, v7"); e("v_lshrrev_b32 v8, 5, v4"); e("v_lshl_add_u32 v7, v8, 4, v7")
e("s_lshl_b32 s30, s30, 5")
e("buffer_load_dwordx4 v[%d:%d], v7, s[16:19], s30 offen" % (MM, MM + 3))
e("buffer_load_dwordx4 v[%d:%d], v7, s[16:19], s30 offen offset:1024" % (MM + 4, MM + 7))
for j in range(16):
    a = ACC + 2 * j
    e("v_cvt_pk_bf16_f32 v%d, v%d, v%d" % (HI + j, a, a + 1))
    e("v_lshlrev_b32 v8, 16, v%d" % (HI + j)); e("v_and_b32 v9, s52, v%d" % (HI + j))
    e("v_sub_f32 v8, v%d, v8" % a); e("v_sub_f32 v9, v%d, v9" % (a + 1))
    e("v_cvt_pk_bf16_f32 v%d, v8, v9" % (LO + j))
e("s_nop 1")
for b in (HI, HI + 8, LO, LO + 8):
    for j in range(4): e("v_permlane32_swap_b32 v%d, v%d" % (b + j, b + 4 + j))
e("s_waitcnt vmcnt(7) lgkmcnt(0)")
e("v_lshlrev_b32 v6, 16, v6")
e("s_mov_b32 s58, 0xc1200000"); e("s_mov_b32 s59, 0x3fb8aa3b")
for j in range(4):
    e("s_lshl_b32 s60, s%d, 16" % (40 + j)); e("s_and_b32 s61, s%d, 0xffff0000" % (40 + j))
    e("v_subrev_f32 v8, s60, v6"); e("v_subrev_f32 v9, s61, v6")
    def rnd():
        e("v_cvt_pk_bf16_f32 v9, v8, v9"); e("v_lshlrev_b32 v8, 16, v9"); e("v_and_b32 v9, s52, v9")
    rnd(); e("v_mul_f32 v8, v8, v8"); e("v_mul_f32 v9, v9, v9")
    rnd(); e("v_mul_f32 v8, s58, v8"); e("v_mul_f32 v9, s58, v9")
    rnd(); e("v_mul_f32 v8, s59, v8"); e("v_mul_f32 v9, s59, v9")
    e("v_exp_f32 v8, v8"); e("v_exp_f32 v9, v9"); e("v_mov_b32 v%d, 0" % (RBF + 4 + j))
    e("v_cvt_pk_bf16_f32 v%d, v8, v9" % (RBF + j))
e("s_nop 1")
for j in range(4): e("v_permlane32_swap_b32 v%d, v%d" % (RBF + j, RBF + 4 + j))
e("s_waitcnt vmcnt(0)")
def mf(d, a, b, c):
    e("v_mfma_f32_32x32x16_bf16 v[%d:%d], v[%d:%d], v[%d:%d], %s" % (d, d + 15, a, a + 3, b, b + 3, c if c == "0" else "v[%d:%d]" % (c, c + 15)))
G = ACC; U = ACC + 16
for h in range(2):
    e("s_nop 1")
    mf(DD, W, HI + 4 * h, "0"); mf(G, W + 8, RBF + 4 * h, "0")
    mf(DD, W, LO + 4 * h, DD); mf(DD, W + 4, HI + 8 + 4 * h, DD); mf(DD, W + 4, LO + 8 + 4 * h, DD)
    mf(U, W + 16, RBF + 4 * h, "0")
    e("s_nop 11")
    for j in range(8):
        e("v_mul_f32 v%d, v%d, v%d" % (G + j, G + j, DD + j))
        e("v_fmac_f32 v%d, v%d, v%d" % (G + j, G + 8 + j, DD + 8 + j))
    for j in range(4):
        a = G + 2 * j
        e("v_cvt_pk_bf16_f32 v%d, v%d, v%d" % (DD + j, a, a + 1))
        e("v_lshlrev_b32 v8, 16, v%d" % (DD + j)); e("v_and_b32 v9, s52, v%d" % (DD + j))
        e("v_sub_f32 v8, v%d, v8" % a); e("v_sub_f32 v9, v%d, v9" % (a + 1))
        e("v_cvt_pk_bf16_f32 v%d, v8, v9" % (DD + 4 + j))
    e("s_nop 1")
    mf(U, W + 12, DD, U); mf(U, W + 12, DD + 4, U)
    e("s_nop 11")
    for j in range(4):
        m = MM + 4 * h + j
        e("v_lshlrev_b32 v8, 16, v%d" % m); e("v_and_b32 v9, s52, v%d" % m)
        e("v_fmac_f32 v8, v%d, v%d" % (U + 2 * j, U + 8 + 2 * j)); e("v_fmac_f32 v9, v%d, v%d" % (U + 2 * j + 1, U + 9 + 2 * j))
        e("v_cvt_pk_bf16_f32 v%d, v8, v9" % m)
    e("buffer_store_dwordx4 v[%d:%d], v7, s[32:35], s30 offen offset:%d" % (MM + 4 * h, MM + 4 * h + 3, 1024 * h))
e("G_EXIT:"); e("s_endpgm")
e('.section .rodata,"a"')
for n, nv in (("part_kernel", 128), ("gath_kernel", NV2)):
    nv = (nv + 3) // 4 * 4
    e(".p2align 6"); e(".amdhsa_kernel %s" % n)
    e("  .amdhsa_next_free_vgpr %d" % nv); e("  .amdhsa_next_free_sgpr 80"); e("  .amdhsa_accum_offset %d" % nv)
    e("  .amdhsa_group_segment_fixed_size 0"); e("  .amdhsa_kernarg_size 112"); e("  .amdhsa_user_sgpr_count 2")
    e("  .amdhsa_user_sgpr_kernarg_segment_ptr 1"); e("  .amdhsa_system_sgpr_workgroup_id_x 1"); e(".end_amdhsa_kernel")
open(sys.argv[1], "w").write("\n".join(out) + "\n")
```

```python
import sys, struct
P = dict(D=4, SYNC=0, NQ=4, PF=0, ST="nt", LD="nt", PFN=1, XM=1, FM=0, RL="nt", BAR=1, PRI=0)
for a in sys.argv[2:]:
    k, v = a.split("=")
    P[k] = int(v) if v.lstrip("-").isdigit() else v
out = []
def e(s=""): out.append(s)
NAME = "gather_scatter__molecular_angular_gemnet__graph"
E, T = 160000, 2560000
NCH, CH = 250, 10240
NB, BE = 250, 640
CSTR = 83968
WS_DESC = NCH * CSTR
WS_W = WS_DESC + NCH * 1024
WS_SZ = WS_W + 5 * 1024
M640 = (2**32 + 639) // 640
NQ = P["NQ"]
MQ = (2**32 * NQ) // E
assert (E - 1) * MQ >> 32 == NQ - 1 and MQ < 2**24
TRASH = 2560
hdr = open("cdna_kernels/%s.s.ref" % NAME).read().split("; Override")[0]
e(hdr.rstrip())
L1 = CSTR + 2048 + 16
CAPW = 1280
SCR = 10272
CNT = SCR + 2576; BIN = CNT + 2576; PERM = BIN + 256
RB = PERM + 2560
L2 = RB + 16 + 10 * CAPW * 8
e("; @launch kernel=part_kernel grid=(251,1,1) block=(512,1,1) lds=%d" % L1)
e("; @launch kernel=gath_kernel grid=(250,1,1) block=(640,1,1) lds=%d" % L2)
e('.amdgcn_target "amdgcn-amd-amdhsa--gfx950"')
e(".text")
def srd(d, b, size, stride=0):
    e("s_mov_b32 s%d, s%d" % (d, b))
    if stride: e("s_or_b32 s%d, s%d, 0x%x" % (d + 1, b + 1, stride << 16))
    else: e("s_mov_b32 s%d, s%d" % (d + 1, b + 1))
    e("s_mov_b32 s%d, %d" % (d + 2, size))
    e("s_mov_b32 s%d, 0x00020000" % (d + 3))
def scan(v):
    for sh in (1, 2, 4, 8):
        e("s_nop 1")
        e("v_add_u32_dpp v%d, v%d, v%d row_shr:%d row_mask:0xf bank_mask:0xf bound_ctrl:0" % (v, v, v, sh))
    e("s_nop 1")
    e("v_add_u32_dpp v%d, v%d, v%d row_bcast:15 row_mask:0xa bank_mask:0xf" % (v, v, v))
    e("s_nop 1")
    e("v_add_u32_dpp v%d, v%d, v%d row_bcast:31 row_mask:0xc bank_mask:0xf" % (v, v, v))
WS_ST = 32 << 20
def stamp(i):
    if P.get("STAMP"):
        e("s_waitcnt lgkmcnt(0)"); e("s_memrealtime s[%d:%d]" % (64 + 2 * i, 65 + 2 * i)); e("s_waitcnt lgkmcnt(0)")
def stamp_out(k, srd0, wreg, sh):
    if P.get("STAMP"):
        e("s_waitcnt vmcnt(0)"); stamp(7)
        for i in range(8): e("v_mov_b32 v%d, s%d" % (8 + i, 64 + 2 * i))
        e("s_lshl_b32 s63, s2, 9"); e("s_lshl_b32 s62, s%d, %d" % (wreg, sh)) if sh >= 0 else e("s_lshr_b32 s62, s%d, %d" % (wreg, -sh))
        e("s_add_u32 s63, s63, s62"); e("s_add_u32 s63, s63, %d" % (WS_ST + k * (1 << 20)))
        e("s_mov_b32 s%d, 0x8000000" % (srd0 + 2)); e("v_mov_b32 v7, 0"); e("s_mov_b64 exec, 1")
        e("buffer_store_dwordx4 v[8:11], v7, s[%d:%d], s63 offen" % (srd0, srd0 + 3))
        e("buffer_store_dwordx4 v[12:15], v7, s[%d:%d], s63 offen offset:16" % (srd0, srd0 + 3))
def kstart(n):
    e(".globl %s" % n); e(".p2align 8"); e(".type %s,@function" % n); e("%s:" % n)

HIST, BASE, STG = 0, 1024, 2064
kstart("part_kernel")
e("s_cmp_ge_u32 s2, 251"); e("s_cbranch_scc1 P_EXIT")
e("s_cmp_eq_u32 s2, 250"); e("s_cbranch_scc1 P_PREP")
stamp(0)
e("s_load_dwordx4 s[4:7], s[0:1], 8")
e("s_load_dwordx2 s[8:9], s[0:1], 32")
e("s_load_dwordx2 s[10:11], s[0:1], 104")
e("v_lshlrev_b32 v1, 4, v0"); e("v_lshlrev_b32 v2, 3, v0"); e("v_lshlrev_b32 v3, 2, v0")
e("v_mov_b32 v4, 0"); e("v_mov_b32 v5, 1")
e("ds_write_b32 v3, v4")
e("s_mul_i32 s28, s2, %d" % (CH * 4)); e("s_mul_i32 s29, s2, %d" % (CH * 2))
e("s_waitcnt lgkmcnt(0)")
srd(12, 4, T * 4); srd(16, 6, T * 4); srd(20, 8, T * 2); srd(24, 10, WS_SZ)
VO, VI, VA, VR = 8, 28, 48, 60
VB = 80
LD = P["LD"].replace("+"," "); P["ST"] = P["ST"].replace("+"," ")
for g in range(5):
    e("s_add_u32 s30, s28, %d" % (g * 8192))
    e("buffer_load_dwordx4 v[%d:%d], v1, s[16:19], s30 offen %s" % (VO + 4 * g, VO + 4 * g + 3, LD))
for g in range(5):
    e("s_add_u32 s30, s29, %d" % (g * 4096))
    e("buffer_load_dwordx2 v[%d:%d], v2, s[20:23], s30 offen %s" % (VA + 2 * g, VA + 2 * g + 1, LD))
    e("s_add_u32 s30, s28, %d" % (g * 8192))
    e("buffer_load_dwordx4 v[%d:%d], v1, s[12:15], s30 offen %s" % (VI + 4 * g, VI + 4 * g + 3, LD))
e("s_mov_b32 s31, %d" % M640); e("s_mov_b32 s32, %d" % MQ); e("s_mov_b32 s33, -640")
e("s_mov_b32 s34, 0xffff0000")
e("s_barrier")
for g in range(5):
    e("s_waitcnt vmcnt(%d)" % (14 - g))
    for j in range(4):
        i = 4 * g + j
        e("v_mul_hi_u32_u24 v%d, s31, v%d" % (VB + i, VO + i))
        e("v_lshlrev_b32 v%d, 2, v%d" % (VB + i, VB + i))
        e("ds_add_rtn_u32 v%d, v%d, v5" % (VR + i, VB + i))
e("v_and_b32 v6, 63, v0"); e("v_lshlrev_b32 v6, 4, v6")
e("s_waitcnt lgkmcnt(0)"); e("s_barrier")
stamp(1)
e("ds_read_b128 v[100:103], v6")
e("s_waitcnt lgkmcnt(0)")
for j in range(4):
    e("v_add_u32 v%d, 1, v%d" % (104 + j, 100 + j)); e("v_lshrrev_b32 v%d, 1, v%d" % (104 + j, 104 + j))
e("v_add_u32 v109, v104, v105"); e("v_add_u32 v110, v109, v106"); e("v_add_u32 v7, v110, v107")
e("v_mov_b32 v111, v7")
scan(7)
e("v_sub_u32 v108, v7, v111")
e("v_add_u32 v111, v108, v110"); e("v_add_u32 v110, v108, v109"); e("v_add_u32 v109, v108, v104")
for j in range(4): e("v_lshlrev_b32 v%d, 4, v%d" % (112 + j, 108 + j))
e("ds_write_b128 v6, v[112:115] offset:%d" % BASE)
e("v_readfirstlane_b32 s35, v0")
e("s_cmp_lg_u32 s35, 0"); e("s_cbranch_scc1 P_NOTW0")
for j in range(4): e("v_lshl_or_b32 v%d, v%d, 16, v%d" % (116 + j, 104 + j, 108 + j))
e("s_lshl_b32 s30, s2, 10"); e("s_add_u32 s30, s30, %d" % WS_DESC)
e("buffer_store_dwordx4 v[116:119], v6, s[24:27], s30 offen")
e("v_mov_b32 v120, %d" % TRASH); e("v_mov_b32 v121, -16")
for j in range(4):
    e("v_and_b32 v122, 1, v%d" % (100 + j)); e("v_cmp_eq_u32 vcc, 1, v122")
    e("v_lshl_add_u32 v122, v%d, 3, v%d" % (100 + j, 112 + j)); e("s_nop 0")
    e("v_cndmask_b32 v122, v121, v122, vcc"); e("v_add_u32 v122, %d, v122" % STG)
    e("ds_write_b32 v122, v120")
e("P_NOTW0:")
e("s_waitcnt lgkmcnt(0)")
stamp(2)
for i in range(20): e("ds_read_b32 v%d, v%d offset:%d" % (100 + i, VB + i, BASE))
for g in range(5):
    e("s_waitcnt vmcnt(%d)" % (8 - 2 * g))
    for j in range(4):
        i = 4 * g + j
        a = VA + 2 * g + j // 2
        t = 120 + 2 * j
        if j % 2 == 0: e("v_lshlrev_b32 v%d, 16, v%d" % (t, a))
        else: e("v_and_b32 v%d, s34, v%d" % (t, a))
        e("v_mul_f32 v%d, 0.15915494, v%d" % (t, t))
        e("v_fract_f32 v%d, v%d" % (t, t))
        e("v_add_f32 v%d, v%d, v%d" % (t + 1, t, t))
        e("v_cos_f32 v%d, v%d" % (t, t)); e("v_cos_f32 v%d, v%d" % (t + 1, t + 1))
        e("v_mul_hi_u32_u24 v6, s32, v%d" % (VI + i))
        e("v_cvt_pk_bf16_f32 v%d, v%d, v%d" % (t + 1, t, t + 1))
        e("v_lshl_add_u32 v6, v%d, 2, v6" % (VO + i))
        e("v_mad_i32_i24 v6, v%d, s33, v6" % (VB + i))
        e("v_lshl_add_u32 v%d, v%d, 14, v6" % (t, VI + i))
        if g == 0 and j == 0: e("s_waitcnt lgkmcnt(0)")
        e("v_lshl_add_u32 v%d, v%d, 3, v%d" % (VR + i, VR + i, 100 + i))
        e("ds_write_b64 v%d, v[%d:%d] offset:%d" % (VR + i, t, t + 1, STG))
e("s_waitcnt lgkmcnt(0)"); e("s_barrier")
stamp(3)
e("v_add_u32 v2, %d, v1" % (5 * 8192))
for g in range(10):
    e("ds_read_b128 v[%d:%d], v%d offset:%d" % (8 + 4 * g, 11 + 4 * g, 1 if g < 5 else 2, STG + (g % 5) * 8192))
e("s_mul_i32 s28, s2, %d" % CSTR)
for g in range(10):
    e("s_add_u32 s30, s28, %d" % (g * 8192))
    e("s_waitcnt lgkmcnt(%d)" % (9 - g))
    e("buffer_store_dwordx4 v[%d:%d], v1, s[24:27], s30 offen %s" % (8 + 4 * g, 11 + 4 * g, P["ST"]))
stamp(4)
e("s_cmp_ge_u32 s35, 128"); e("s_cbranch_scc1 P_FIN")
e("ds_read_b128 v[48:51], v2 offset:%d" % (STG + 5 * 8192))
e("s_add_u32 s30, s28, %d" % (10 * 8192))
e("s_waitcnt lgkmcnt(0)")
e("buffer_store_dwordx4 v[48:51], v1, s[24:27], s30 offen %s" % P["ST"])
e("P_FIN:"); stamp_out(0, 24, 35, -1)
e("P_EXIT:"); e("s_endpgm")
e("P_PREP:")
e("v_readfirstlane_b32 s35, v0"); e("s_cmp_lg_u32 s35, 0"); e("s_cbranch_scc1 P_EXIT")
e("s_load_dwordx8 s[4:11], s[0:1], 56")
e("s_load_dwordx2 s[36:37], s[0:1], 104")
e("v_and_b32 v1, 3, v0"); e("v_bfe_u32 v2, v0, 2, 1"); e("v_lshl_add_u32 v1, v2, 3, v1")
e("v_bfe_u32 v2, v0, 3, 1"); e("v_lshl_add_u32 v1, v2, 2, v1"); e("v_lshlrev_b32 v1, 1, v1")
e("v_bfe_u32 v2, v0, 4, 1"); e("v_lshrrev_b32 v3, 5, v0")
e("v_xor_b32 v4, 1, v2")
e("v_lshl_add_u32 v5, v3, 8, v1")
e("v_lshl_add_u32 v10, v2, 20, v5")
e("v_lshl_add_u32 v11, v4, 20, v5")
e("v_lshl_add_u32 v12, v2, 5, v1"); e("v_lshl_add_u32 v12, v3, 20, v12")
e("s_waitcnt lgkmcnt(0)")
srd(12, 4, 256); srd(16, 6, 512); srd(20, 8, 512); srd(24, 10, 512); srd(28, 36, WS_SZ)
imgs = [(10, 20, 32), (11, 20, 32), (12, 16, 64), (10, 24, 32), (11, 12, 32)]
for n, (va, s, st) in enumerate(imgs):
    for j in range(8):
        e("buffer_load_ushort v%d, v%d, s[%d:%d], 0 offen offset:%d" % (16 + 8 * n + j, va, s, s + 3, j * st))
e("v_lshlrev_b32 v1, 4, v0"); e("s_mov_b32 s3, %d" % WS_W)
e("s_waitcnt vmcnt(0)")
for n in range(5):
    for j in range(4):
        e("v_lshl_or_b32 v%d, v%d, 16, v%d" % (60 + 4 * n + j, 17 + 8 * n + 2 * j, 16 + 8 * n + 2 * j))
for n in range(5):
    e("buffer_store_dwordx4 v[%d:%d], v1, s[28:31], s3 offen" % (60 + 4 * n, 63 + 4 * n))
    e("s_add_u32 s3, s3, 1024")
e("s_endpgm")

D = P["D"]
ACC = 16; ROW = 48; CW = ROW + 8 * D; REC = CW + 2 * D; HD = REC + 4
UN = HD + 4
LNK = 48
PFV = max(UN + 8, 132); EV = PFV + 1; NV2 = EV + 1
MORE = 10256
kstart("gath_kernel")
e("s_cmp_ge_u32 s2, 250"); e("s_cbranch_scc1 G_EXIT")
stamp(0)
e("s_load_dwordx2 s[4:5], s[0:1], 0")
e("s_load_dwordx2 s[6:7], s[0:1], 24")
e("s_load_dwordx2 s[8:9], s[0:1], 88")
e("s_load_dwordx2 s[10:11], s[0:1], 104")
e("s_load_dwordx2 s[36:37], s[0:1], 40")
e("v_lshrrev_b32 v2, 6, v0"); e("v_and_b32 v4, 63, v0")
e("v_readfirstlane_b32 s3, v2")
e("v_lshlrev_b32 v1, 4, v4")
e("v_mul_u32_u24 v2, 25, v2"); e("v_add_u32 v2, v2, v4")
e("v_lshlrev_b32 v5, 10, v2"); e("v_mov_b32 v3, 0"); e("v_mov_b32 v15, 1")
e("s_lshl_b32 s30, s2, 2"); e("s_add_u32 s30, s30, %d" % WS_DESC)
e("s_waitcnt lgkmcnt(0)")
srd(24, 10, WS_SZ)
e("s_mov_b64 exec, 0x1ffffff")
e("buffer_load_dword v3, v5, s[24:27], s30 offen")
e("s_mov_b64 exec, -1")
e("s_load_dwordx4 s[40:43], s[36:37], 0")
srd(16, 4, E * 32); srd(20, 6, E * 2); srd(32, 8, E * 32)
e("s_mov_b32 s38, %d" % CSTR)
e("v_mul_lo_u32 v2, v2, s38")
for i in range(32): e("v_mov_b32 v%d, 0" % (ACC + i))
e("v_mov_b32 v5, 0xffffc000"); e("v_mov_b32 v6, %d" % RB)
e("ds_write2_b32 v6, v5, v16 offset0:0 offset1:1")
e("v_mov_b32 v6, %d" % MORE); e("ds_write_b32 v6, v16")
e("s_mov_b32 s44, 0")
e("s_mov_b32 s52, 0xffff0000"); e("s_movk_i32 s53, 0x3fff"); e("s_mov_b32 s54, 0x1fff8")
e("s_mul_i32 s55, s3, %d" % (CAPW * 8)); e("s_add_u32 s55, s55, %d" % (RB + 16))
e("s_lshl_b32 s45, s3, 8"); e("s_add_u32 s45, s45, %d" % SCR)
e("v_lshl_add_u32 v13, v4, 2, s45")
e("v_and_b32 v14, 1, v4"); e("v_lshlrev_b32 v14, 4, v14")
e("s_waitcnt vmcnt(0)")
e("v_and_b32 v5, 0xffff, v3"); e("v_lshl_add_u32 v2, v5, 4, v2"); e("v_lshrrev_b32 v3, 16, v3")
stamp(1)
e("G_ROUND:")
e("v_lshlrev_b32 v5, 4, v0")
for i in range(4): e("v_mov_b32 v%d, 0" % (8 + i))
e("ds_write_b32 v13, v8")
e("ds_write_b128 v5, v[8:11]")
e("v_lshlrev_b32 v5, 2, v0"); e("ds_write_b32 v5, v8 offset:%d" % CNT); e("ds_write_b32 v5, v8 offset:%d" % (BIN - 16))
e("v_mov_b32 v7, v3")
for sh in (1, 2, 4, 8):
    e("s_nop 1"); e("v_add_u32_dpp v7, v7, v7 row_shr:%d row_mask:0xf bank_mask:0xf bound_ctrl:0" % sh)
e("s_nop 1"); e("v_add_u32_dpp v7, v7, v7 row_bcast:15 row_mask:0xa bank_mask:0xf")
e("v_sub_u32 v6, v7, v3")
e("v_min_u32 v7, %d, v7" % (CAPW // 2)); e("v_min_u32 v6, %d, v6" % (CAPW // 2))
e("v_sub_u32 v8, v7, v6")
e("v_readlane_b32 s49, v7, 31")
e("v_cmp_lt_u32 vcc, 0, v8")
e("v_lshlrev_b32 v9, 4, v6"); e("v_sub_u32 v9, v2, v9")
e("v_mbcnt_lo_u32_b32 v10, vcc_lo, 0"); e("v_lshl_add_u32 v10, v10, 2, s45")
e("v_subrev_u32 v6, 1, v6")
e("v_lshlrev_b32 v11, v6, v15")
e("v_ashrrev_i32 v6, 5, v6"); e("v_lshl_add_u32 v6, v6, 2, s45")
e("s_mov_b64 exec, vcc")
e("ds_write_b32 v10, v9 offset:128")
e("ds_or_b32 v6, v11 offset:4")
e("s_mov_b64 exec, -1")
e("ds_read_b32 v6, v13 offset:4")
e("v_lshl_add_u32 v2, v8, 4, v2"); e("v_sub_u32 v3, v3, v8")
e("v_cmp_lt_u32 vcc, 0, v3")
e("s_add_u32 s50, s49, 63"); e("s_lshr_b32 s50, s50, 6")
e("s_mov_b32 s46, vcc_lo")
e("s_sub_u32 s51, 0, s49"); e("s_and_b32 s51, s51, 63"); e("s_lshr_b64 s[58:59], -1, s51")
e("s_lshr_b32 s47, s45, 2"); e("s_add_u32 s47, s47, 32")
e("s_waitcnt lgkmcnt(0)")
AD = 88; XR = 98
for i in range(10):
    e("v_readlane_b32 s60, v6, %d" % (2 * i)); e("v_readlane_b32 s61, v6, %d" % (2 * i + 1))
    e("v_mov_b32 v7, s47"); e("s_nop 0")
    e("v_mbcnt_lo_u32_b32 v7, s60, v7"); e("v_mbcnt_hi_u32_b32 v7, s61, v7")
    e("s_bcnt1_i32_b64 s48, s[60:61]"); e("v_lshlrev_b32 v7, 2, v7"); e("s_add_u32 s47, s47, s48")
    e("ds_read_b32 v%d, v7" % (AD + i))
e("s_mov_b32 s48, 0")
for i in range(10):
    e("s_waitcnt lgkmcnt(%d)" % (9 - i))
    e("v_add_u32 v%d, v%d, v1" % (AD + i, AD + i))
    if i % 4 == 0 and i: e("s_add_u32 s48, s48, 4096")
    e("s_cmp_gt_u32 s50, %d" % i); e("s_cselect_b64 exec, -1, 1")
    e("buffer_load_dwordx4 v[%d:%d], v%d, s[24:27], s48 offen offset:%d %s" % (LNK + 4 * i, LNK + 4 * i + 3, AD + i, (i % 4) * 1024, P["RL"]))
e("s_mov_b64 exec, -1")
e("G_F3:")
NAFT = 0
PFL = (E * 32 // 128 // NQ + 31) // 32
def prefetch():
    e("buffer_load_dword v12, v%d, s[16:19], s63 offen" % PFV)
    e("s_add_u32 s63, s63, %d" % (E * 32 // NQ))
if P["PF"]:
    e("s_lshr_b32 s63, s2, 3"); e("s_mul_i32 s63, s63, %d" % (PFL * 128))
    e("v_lshlrev_b32 v%d, 7, v0" % PFV); e("v_cmp_gt_u32 vcc, %d, v0" % PFL); e("s_nop 1")
    e("v_cndmask_b32 v%d, -1, v%d, vcc" % (PFV, PFV)); e("v_lshrrev_b32 v5, 1, v%d" % PFV); e("v_cndmask_b32 v%d, v5, v%d, vcc" % (PFV, PFV))
    prefetch(); NAFT = 1
stamp(2)
e("s_waitcnt lgkmcnt(0)"); e("s_barrier")
e("s_cmp_eq_u32 s46, 0"); e("s_cbranch_scc1 G_NOMORE")
e("s_add_u32 s30, s44, 1"); e("v_mov_b32 v5, s30"); e("v_mov_b32 v6, %d" % MORE); e("ds_max_u32 v6, v5")
e("G_NOMORE:")
e("v_add_u32 v5, s55, v1")
e("v_subrev_u32 v6, %d, v5" % RB); e("v_lshrrev_b32 v6, 3, v6")
for i in range(10):
    r = LNK + 4 * i
    e("s_cmp_le_u32 s50, %d" % i); e("s_cbranch_scc1 G_L1")
    e("s_cmp_eq_u32 s50, %d" % (i + 1)); e("s_cselect_b64 exec, s[58:59], -1")
    e("s_waitcnt vmcnt(%d)" % (9 - i + NAFT))
    e("v_and_b32 v8, s53, v%d" % r); e("v_and_b32 v9, s53, v%d" % (r + 2))
    e("v_and_b32 v10, -4, v8"); e("v_and_b32 v11, -4, v9")
    e("v_lshlrev_b32 v8, 2, v8"); e("v_lshlrev_b32 v9, 2, v9"); e("v_add_u32 v7, 1, v6")
    e("ds_wrxchg_rtn_b32 v%d, v8, v6" % (XR + 2 * i)); e("ds_wrxchg_rtn_b32 v%d, v9, v7" % (XR + 2 * i + 1))
    e("ds_add_u32 v10, v15 offset:%d" % CNT); e("ds_add_u32 v11, v15 offset:%d" % CNT)
    e("v_add_u32 v6, 128, v6")
e("G_L1:")
e("s_mov_b64 exec, -1")
e("s_waitcnt lgkmcnt(0)"); stamp(3)
for i in range(10):
    r = LNK + 4 * i
    e("s_cmp_le_u32 s50, %d" % i); e("s_cbranch_scc1 G_L2")
    e("v_bfi_b32 v%d, s53, v%d, v%d" % (r, XR + 2 * i, r)); e("v_bfi_b32 v%d, s53, v%d, v%d" % (r + 2, XR + 2 * i + 1, r + 2))
    e("ds_write_b128 v5, v[%d:%d] offset:%d" % (r, r + 3, 1024 * i))
e("G_L2:")
e("v_lshlrev_b32 v5, 2, v0")
e("s_waitcnt lgkmcnt(0)"); e("s_barrier")
e("s_cmp_lg_u32 s44, 0"); e("s_cbranch_scc1 G_SORTED")
e("ds_read_b32 v6, v5 offset:%d" % CNT)
e("s_waitcnt lgkmcnt(0)")
e("v_min_u32 v6, 63, v6"); e("v_lshlrev_b32 v6, 2, v6")
e("ds_add_rtn_u32 v7, v6, v15 offset:%d" % BIN)
e("v_lshlrev_b32 v8, 2, v4")
e("s_waitcnt lgkmcnt(0)"); e("s_barrier")
e("ds_read_b32 v9, v8 offset:%d" % BIN)
e("s_waitcnt lgkmcnt(0)")
e("v_mov_b32 v10, v9")
scan(10)
e("v_sub_u32 v10, v10, v9")
e("ds_bpermute_b32 v10, v6, v10")
e("s_mov_b32 s60, 0x72348910"); e("s_movk_i32 s61, 0x56"); e("s_lshl_b32 s48, s3, 2"); e("s_lshr_b64 s[60:61], s[60:61], s48")
e("s_and_b32 s60, s60, 15")
if P["PRI"]:
    th = {1: (4, 7, 9), 2: (7, 8, 9), 3: (9, 9, 9), 4: (2, 5, 8)}[P["PRI"]]
    for n, t in enumerate(th):
        e("s_cmp_lt_u32 s60, %d" % t); e("s_cbranch_scc1 G_PR"); e("s_setprio %d" % (n + 1))
    e("G_PR:")
e("s_lshl_b32 s60, s60, 8")
e("s_waitcnt lgkmcnt(0)")
e("v_add_lshl_u32 v10, v10, v7, 2")
e("ds_write_b32 v10, v5 offset:%d" % PERM)
e("v_add_u32 v8, s60, v8")
e("s_waitcnt lgkmcnt(0)"); e("s_barrier")
e("ds_read_b32 v%d, v8 offset:%d" % (EV, PERM))
e("s_waitcnt lgkmcnt(0)")
e("G_SORTED:")
e("v_lshlrev_b32 v5, 2, v%d" % EV); e("v_mov_b32 v6, %d" % MORE)
e("ds_read_b128 v[%d:%d], v5" % (HD, HD + 3)); e("ds_read_b32 v6, v6"); e("ds_read_b32 v7, v%d offset:%d" % (EV, CNT))
e("s_waitcnt lgkmcnt(0)")
e("v_readlane_b32 s47, v7, 63")
e("s_mov_b32 s57, %d" % (NQ - 1)); e("s_mov_b32 s48, 0")
e("v_readfirstlane_b32 s56, v6"); stamp(4)
for i in range(4): e("v_lshlrev_b32 v%d, 3, v%d" % (HD + i, HD + i))
SYNC = P["SYNC"]
if not SYNC:
    for k in range(NQ - 2, -1, -1):
        e("v_cmp_eq_u32 vcc, 0, v%d" % (HD + k)); e("s_nop 1")
        for j in range(k, NQ - 1): e("v_cndmask_b32 v%d, v%d, v%d, vcc" % (HD + j, HD + j, HD + j + 1))
        e("v_cndmask_b32 v%d, v%d, 0, vcc" % (HD + NQ - 1, HD + NQ - 1))
else:
    e("s_mov_b32 s57, %d" % (NQ - 1))
e("ds_read_b64 v[%d:%d], v%d offset:%d" % (REC, REC + 1, HD, RB))
def consume(k):
    for h in range(2):
        e("v_lshlrev_b32 v%d, 16, v%d" % (UN + 4, CW + 2 * k + h)); e("v_and_b32 v%d, s52, v%d" % (UN + 5, CW + 2 * k + h))
        for j in range(4):
            u = UN + 2 * (j % 2); r = ROW + 8 * k + 4 * h + j
            e("v_lshlrev_b32 v%d, 16, v%d" % (u, r)); e("v_and_b32 v%d, s52, v%d" % (u + 1, r))
            a = ACC + 8 * h + 2 * j
            if P["FM"] == 2: break
            e("v_pk_fma_f32 v[%d:%d], v[%d:%d], v[%d:%d], v[%d:%d] op_sel_hi:[1,0,1]" % (a, a + 1, u, u + 1, UN + 4, UN + 5, a, a + 1))
            a += 16
            e("v_pk_fma_f32 v[%d:%d], v[%d:%d], v[%d:%d], v[%d:%d] op_sel:[0,1,0]" % (a, a + 1, u, u + 1, UN + 4, UN + 5, a, a + 1))
QP = ["quad_perm:[0,0,2,2] row_mask:0xf bank_mask:0xf", "quad_perm:[1,1,3,3] row_mask:0xf bank_mask:0xf"]
def chase(k, par, tag):
    r = REC + 2 * par; n = REC + 2 * (par ^ 1)
    e("s_waitcnt lgkmcnt(0)")
    e("v_lshrrev_b32 v5, 9, v%d" % r); e("v_and_b32 v5, %s, v5" % (P["HACK"] * 32 if P.get("HACK") else "-32"))
    e("v_lshlrev_b32 v%d, 3, v%d" % (HD, r)); e("v_and_b32 v%d, s54, v%d" % (HD, HD))
    e("v_add_u32_dpp v6, v5, v14 " + QP[0]); e("v_add_u32_dpp v7, v5, v14 " + QP[1])
    e("buffer_load_dwordx4 v[%d:%d], v6, s[16:19], 0 offen" % (ROW + 8 * k, ROW + 8 * k + 3))
    e("buffer_load_dwordx4 v[%d:%d], v7, s[16:19], 0 offen" % (ROW + 8 * k + 4, ROW + 8 * k + 7))
    if not SYNC:
        e("v_cmp_eq_u32 vcc, 0, v%d" % HD);
        for h in range(2): e("v_mov_b32_dpp v%d, v%d " % (CW + 2 * k + h, r + 1) + QP[h])
        for j in range(NQ - 1): e("v_cndmask_b32 v%d, v%d, v%d, vcc" % (HD + j, HD + j, HD + j + 1))
        if NQ > 1: e("v_cndmask_b32 v%d, v%d, 0, vcc" % (HD + NQ - 1, HD + NQ - 1))
        e("v_cmp_ne_u32 vcc, 0, v%d" % HD)
        e("ds_read_b64 v[%d:%d], v%d offset:%d" % (n, n + 1, HD, RB))
        e("s_cbranch_vccz G_DR%s" % tag)
        if P["BAR"]:
            e("s_add_u32 s48, s48, %d" % NQ); e("s_cmp_lt_u32 s48, s47"); e("s_cbranch_scc1 G_NB%s" % tag)
            e("s_cmp_eq_u32 s57, 0"); e("s_cbranch_scc1 G_NB%s" % tag)
            e("s_sub_u32 s48, s48, s47"); e("s_sub_u32 s57, s57, 1"); e("s_barrier")
            e("G_NB%s:" % tag)
    else:
        for h in range(2): e("v_mov_b32_dpp v%d, v%d " % (CW + 2 * k + h, r + 1) + QP[h])
        e("G_CK%s:" % tag)
        e("v_cmp_ne_u32 vcc, 0, v%d" % HD)
        e("s_cbranch_vccnz G_GO%s" % tag)
        e("s_cmp_eq_u32 s57, 0"); e("s_cbranch_scc1 G_DR%s" % tag)
        e("s_sub_u32 s57, s57, 1")
        if P["BAR"]: e("s_barrier")
        for j in range(NQ - 1): e("v_mov_b32 v%d, v%d" % (HD + j, HD + j + 1))
        e("s_branch G_CK%s" % tag)
        e("G_GO%s:" % tag)
        e("ds_read_b64 v[%d:%d], v%d offset:%d" % (n, n + 1, HD, RB))
assert D % 2 == 0
e("s_movk_i32 s62, 0x2000")
for k in range(D): chase(k, k % 2, "P%d" % k)
e("G_LOOP:")
for k in range(D):
    e("s_waitcnt vmcnt(%d)" % (2 * (D - 1)))
    consume(k)
    chase(k, k % 2, "L%d" % k)
e("s_sub_u32 s62, s62, 1"); e("s_cbranch_scc0 G_LOOP"); e("s_branch G_DRL%d" % (D - 1))
for k in range(D):
    e("G_DRP%d:" % k)
    for j in range(k + 1):
        e("s_waitcnt vmcnt(%d)" % (2 * (k - j))); consume(j)
    e("s_branch G_DONE")
for k in range(D):
    e("G_DRL%d:" % k)
    for j in range(D):
        e("s_waitcnt vmcnt(%d)" % (2 * (D - 1 - j))); consume((k + 1 + j) % D)
    e("s_branch G_DONE")
e("G_DONE:"); e("s_waitcnt lgkmcnt(0)")
if P["BAR"]:
    e("s_cmp_eq_u32 s57, 0"); e("s_cbranch_scc1 G_DN2"); e("s_sub_u32 s57, s57, 1"); e("s_barrier"); e("s_branch G_DONE"); e("G_DN2:")
e("s_cmp_le_u32 s56, s44"); e("s_cbranch_scc1 G_EPI")
e("s_add_u32 s44, s44, 1"); e("s_waitcnt lgkmcnt(0)"); e("s_barrier")
e("s_branch G_ROUND")
e("G_EPI:"); stamp(5)
W = 48; MM = 68; RBF = 76; HI = 84; LO = 100; DD = 116
e("s_mul_i32 s31, s2, 1280"); e("v_lshrrev_b32 v5, 1, v%d" % EV)
e("buffer_load_ushort v6, v5, s[20:23], s31 offen")
e("s_mov_b32 s31, %d" % WS_W)
for n in range(5):
    e("buffer_load_dwordx4 v[%d:%d], v1, s[24:27], s31 offen offset:%d" % (W + 4 * n, W + 4 * n + 3, 1024 * n if n < 4 else 0))
    if n == 3: e("s_add_u32 s31, s31, 4096")
e("v_lshlrev_b32 v7, 3, v%d" % EV); e("v_add_u32 v10, 16, v7"); e("s_mul_i32 s30, s2, %d" % (640 * 32)); e("s_nop 0")
e("v_permlane32_swap_b32 v7, v10")
e("buffer_load_dwordx4 v[%d:%d], v7, s[16:19], s30 offen" % (MM, MM + 3))
e("buffer_load_dwordx4 v[%d:%d], v10, s[16:19], s30 offen" % (MM + 4, MM + 7))
for j in range(16):
    a = ACC + 2 * j
    e("v_cvt_pk_bf16_f32 v%d, v%d, v%d" % (HI + j, a, a + 1))
    e("v_lshlrev_b32 v8, 16, v%d" % (HI + j)); e("v_and_b32 v9, s52, v%d" % (HI + j))
    e("v_sub_f32 v8, v%d, v8" % a); e("v_sub_f32 v9, v%d, v9" % (a + 1))
    e("v_cvt_pk_bf16_f32 v%d, v8, v9" % (LO + j))
SW = "quad_perm:[1,0,3,2] row_mask:0xf bank_mask:0xf"
e("s_mov_b32 vcc_lo, 0x55555555"); e("s_mov_b32 vcc_hi, 0x55555555")
for n, b in enumerate((HI, HI + 8, LO, LO + 8)):
    for j in range(4): e("v_cndmask_b32_dpp v%d, v%d, v%d, vcc %s" % (ACC + 8 * n + j, b + 4 + j, b + j, SW))
e("s_not_b64 vcc, vcc")
for n, b in enumerate((HI, HI + 8, LO, LO + 8)):
    for j in range(4): e("v_cndmask_b32_dpp v%d, v%d, v%d, vcc %s" % (ACC + 8 * n + 4 + j, b + j, b + 4 + j, SW))
G = HI; U = LO; HI = ACC; LO = ACC + 16
e("s_nop 1")
for b in (HI, HI + 8, LO, LO + 8):
    for j in range(4): e("v_permlane32_swap_b32 v%d, v%d" % (b + j, b + 4 + j))
e("s_waitcnt vmcnt(7) lgkmcnt(0)")
e("v_lshlrev_b32 v6, 16, v6")
e("s_mov_b32 s58, 0xc1200000"); e("s_mov_b32 s59, 0x3fb8aa3b")
for j in range(4):
    e("s_lshl_b32 s60, s%d, 16" % (40 + j)); e("s_and_b32 s61, s%d, 0xffff0000" % (40 + j))
    e("v_subrev_f32 v8, s60, v6"); e("v_subrev_f32 v9, s61, v6")
    def rnd():
        e("v_cvt_pk_bf16_f32 v9, v8, v9"); e("v_lshlrev_b32 v8, 16, v9"); e("v_and_b32 v9, s52, v9")
    rnd(); e("v_mul_f32 v8, v8, v8"); e("v_mul_f32 v9, v9, v9")
    rnd(); e("v_mul_f32 v8, s58, v8"); e("v_mul_f32 v9, s58, v9")
    rnd(); e("v_mul_f32 v8, s59, v8"); e("v_mul_f32 v9, s59, v9")
    e("v_exp_f32 v8, v8"); e("v_exp_f32 v9, v9"); e("v_mov_b32 v%d, 0" % (RBF + 4 + j))
    e("v_cvt_pk_bf16_f32 v%d, v8, v9" % (RBF + j))
e("s_nop 1")
for j in range(4): e("v_permlane32_swap_b32 v%d, v%d" % (RBF + j, RBF + 4 + j))
e("s_waitcnt vmcnt(0)")
def mf(d, a, b, c):
    e("v_mfma_f32_32x32x16_bf16 v[%d:%d], v[%d:%d], v[%d:%d], %s" % (d, d + 15, a, a + 3, b, b + 3, c if c == "0" else "v[%d:%d]" % (c, c + 15)))
for h in range(2):
    e("s_nop 1")
    mf(DD, W, HI + 4 * h, "0"); mf(G, W + 8, RBF + 4 * h, "0")
    mf(DD, W, LO + 4 * h, DD); mf(DD, W + 4, HI + 8 + 4 * h, DD); mf(DD, W + 4, LO + 8 + 4 * h, DD)
    mf(U, W + 16, RBF + 4 * h, "0")
    e("s_nop 11")
    for j in range(8):
        e("v_mul_f32 v%d, v%d, v%d" % (G + j, G + j, DD + j))
        e("v_fmac_f32 v%d, v%d, v%d" % (G + j, G + 8 + j, DD + 8 + j))
    for j in range(4):
        a = G + 2 * j
        e("v_cvt_pk_bf16_f32 v%d, v%d, v%d" % (DD + j, a, a + 1))
        e("v_lshlrev_b32 v8, 16, v%d" % (DD + j)); e("v_and_b32 v9, s52, v%d" % (DD + j))
        e("v_sub_f32 v8, v%d, v8" % a); e("v_sub_f32 v9, v%d, v9" % (a + 1))
        e("v_cvt_pk_bf16_f32 v%d, v8, v9" % (DD + 4 + j))
    e("s_nop 1")
    mf(U, W + 12, DD, U); mf(U, W + 12, DD + 4, U)
    e("s_nop 11")
    for j in range(4):
        m = MM + 4 * h + j
        e("v_lshlrev_b32 v8, 16, v%d" % m); e("v_and_b32 v9, s52, v%d" % m)
        e("v_fmac_f32 v8, v%d, v%d" % (U + 2 * j, U + 8 + 2 * j)); e("v_fmac_f32 v9, v%d, v%d" % (U + 2 * j + 1, U + 9 + 2 * j))
        e("v_cvt_pk_bf16_f32 v%d, v8, v9" % m)
    e("buffer_store_dwordx4 v[%d:%d], v%d, s[32:35], s30 offen" % (MM + 4 * h, MM + 4 * h + 3, (7, 10)[h]))
stamp(6); stamp_out(1, 24, 3, 5)
e("G_EXIT:"); e("s_endpgm")
e('.section .rodata,"a"')
for n, nv in (("part_kernel", 128), ("gath_kernel", NV2)):
    nv = (nv + 3) // 4 * 4
    e(".p2align 6"); e(".amdhsa_kernel %s" % n)
    e("  .amdhsa_next_free_vgpr %d" % nv); e("  .amdhsa_next_free_sgpr 80"); e("  .amdhsa_accum_offset %d" % nv)
    e("  .amdhsa_group_segment_fixed_size 0"); e("  .amdhsa_kernarg_size 112"); e("  .amdhsa_user_sgpr_count 2")
    e("  .amdhsa_user_sgpr_kernarg_segment_ptr 1"); e("  .amdhsa_system_sgpr_workgroup_id_x 1"); e(".end_amdhsa_kernel")
open(sys.argv[1], "w").write("\n".join(out) + "\n")
```

```python
import sys, struct
P = dict(D=2, SYNC=0, NQ=4, PF=1, ST="nt", LD="nt", PFN=1, XM=1, FM=0, RL="nt", BAR=2, PRI=0)
for a in sys.argv[2:]:
    k, v = a.split("=")
    P[k] = int(v) if v.lstrip("-").isdigit() else v
out = []
def e(s=""): out.append(s)
NAME = "gather_scatter__molecular_angular_gemnet__graph"
E, T = 160000, 2560000
NCH, CH = 250, 10240
NB, BE = 250, 640
CSTR = 83968
WS_DESC = NCH * CSTR
WS_W = WS_DESC + NCH * 1024
WS_SZ = WS_W + 5 * 1024
M640 = (2**32 + 639) // 640
NQ = P["NQ"]
MQ = (2**32 * NQ) // E
assert (E - 1) * MQ >> 32 == NQ - 1 and MQ < 2**24
TRASH = 2560
hdr = open("cdna_kernels/%s.s.ref" % NAME).read().split("; Override")[0]
e(hdr.rstrip())
L1 = CSTR + 2048 + 16
CAPW = 1280
SCR = 10272
CNT = SCR + 2576; BIN = CNT + 2576; PERM = BIN + 256
RBL = PERM + 2560
RB = RBL + 10240
L2 = RB + 16 + 10 * CAPW * 8
e("; @launch kernel=part_kernel grid=(251,1,1) block=(512,1,1) lds=%d" % L1)
e("; @launch kernel=gath_kernel grid=(250,1,1) block=(640,1,1) lds=%d" % L2)
e('.amdgcn_target "amdgcn-amd-amdhsa--gfx950"')
e(".text")
def srd(d, b, size, stride=0):
    e("s_mov_b32 s%d, s%d" % (d, b))
    if stride: e("s_or_b32 s%d, s%d, 0x%x" % (d + 1, b + 1, stride << 16))
    else: e("s_mov_b32 s%d, s%d" % (d + 1, b + 1))
    e("s_mov_b32 s%d, %d" % (d + 2, size))
    e("s_mov_b32 s%d, 0x00020000" % (d + 3))
def scan(v):
    for sh in (1, 2, 4, 8):
        e("s_nop 1")
        e("v_add_u32_dpp v%d, v%d, v%d row_shr:%d row_mask:0xf bank_mask:0xf bound_ctrl:0" % (v, v, v, sh))
    e("s_nop 1")
    e("v_add_u32_dpp v%d, v%d, v%d row_bcast:15 row_mask:0xa bank_mask:0xf" % (v, v, v))
    e("s_nop 1")
    e("v_add_u32_dpp v%d, v%d, v%d row_bcast:31 row_mask:0xc bank_mask:0xf" % (v, v, v))
WS_ST = 32 << 20
def stamp(i):
    if P.get("STAMP"):
        e("s_waitcnt lgkmcnt(0)"); e("s_memrealtime s[%d:%d]" % (64 + 2 * i, 65 + 2 * i)); e("s_waitcnt lgkmcnt(0)")
def stamp_out(k, srd0, wreg, sh):
    if P.get("STAMP"):
        e("s_waitcnt vmcnt(0)"); stamp(7)
        for i in range(8): e("v_mov_b32 v%d, s%d" % (8 + i, 64 + 2 * i))
        e("s_lshl_b32 s63, s2, 9"); e("s_lshl_b32 s62, s%d, %d" % (wreg, sh)) if sh >= 0 else e("s_lshr_b32 s62, s%d, %d" % (wreg, -sh))
        e("s_add_u32 s63, s63, s62"); e("s_add_u32 s63, s63, %d" % (WS_ST + k * (1 << 20)))
        e("s_mov_b32 s%d, 0x8000000" % (srd0 + 2)); e("v_mov_b32 v7, 0"); e("s_mov_b64 exec, 1")
        e("buffer_store_dwordx4 v[8:11], v7, s[%d:%d], s63 offen" % (srd0, srd0 + 3))
        e("buffer_store_dwordx4 v[12:15], v7, s[%d:%d], s63 offen offset:16" % (srd0, srd0 + 3))
def kstart(n):
    e(".globl %s" % n); e(".p2align 8"); e(".type %s,@function" % n); e("%s:" % n)

HIST, BASE, STG = 0, 1024, 2064
kstart("part_kernel")
e("s_cmp_ge_u32 s2, 251"); e("s_cbranch_scc1 P_EXIT")
e("s_cmp_eq_u32 s2, 250"); e("s_cbranch_scc1 P_PREP")
stamp(0)
e("s_load_dwordx4 s[4:7], s[0:1], 8")
e("s_load_dwordx2 s[8:9], s[0:1], 32")
e("s_load_dwordx2 s[10:11], s[0:1], 104")
e("v_lshlrev_b32 v1, 4, v0"); e("v_lshlrev_b32 v2, 3, v0"); e("v_lshlrev_b32 v3, 2, v0")
e("v_mov_b32 v4, 0"); e("v_mov_b32 v5, 1")
e("ds_write_b32 v3, v4")
e("s_mul_i32 s28, s2, %d" % (CH * 4)); e("s_mul_i32 s29, s2, %d" % (CH * 2))
e("s_waitcnt lgkmcnt(0)")
srd(12, 4, T * 4); srd(16, 6, T * 4); srd(20, 8, T * 2); srd(24, 10, WS_SZ)
VO, VI, VA, VR = 8, 28, 48, 60
VB = 80
LD = P["LD"].replace("+"," "); P["ST"] = P["ST"].replace("+"," ")
for g in range(5):
    e("s_add_u32 s30, s28, %d" % (g * 8192))
    e("buffer_load_dwordx4 v[%d:%d], v1, s[16:19], s30 offen %s" % (VO + 4 * g, VO + 4 * g + 3, LD))
for g in range(5):
    e("s_add_u32 s30, s29, %d" % (g * 4096))
    e("buffer_load_dwordx2 v[%d:%d], v2, s[20:23], s30 offen %s" % (VA + 2 * g, VA + 2 * g + 1, LD))
    e("s_add_u32 s30, s28, %d" % (g * 8192))
    e("buffer_load_dwordx4 v[%d:%d], v1, s[12:15], s30 offen %s" % (VI + 4 * g, VI + 4 * g + 3, LD))
e("s_mov_b32 s31, %d" % M640); e("s_mov_b32 s32, %d" % MQ); e("s_mov_b32 s33, -640")
e("s_mov_b32 s34, 0xffff0000")
e("s_barrier")
for g in range(5):
    e("s_waitcnt vmcnt(%d)" % (14 - g))
    for j in range(4):
        i = 4 * g + j
        e("v_mul_hi_u32_u24 v%d, s31, v%d" % (VB + i, VO + i))
        e("v_lshlrev_b32 v%d, 2, v%d" % (VB + i, VB + i))
        e("ds_add_rtn_u32 v%d, v%d, v5" % (VR + i, VB + i))
e("v_and_b32 v6, 63, v0"); e("v_lshlrev_b32 v6, 4, v6")
e("s_waitcnt lgkmcnt(0)"); e("s_barrier")
stamp(1)
e("ds_read_b128 v[100:103], v6")
e("s_waitcnt lgkmcnt(0)")
for j in range(4):
    e("v_add_u32 v%d, 1, v%d" % (104 + j, 100 + j)); e("v_lshrrev_b32 v%d, 1, v%d" % (104 + j, 104 + j))
e("v_add_u32 v109, v104, v105"); e("v_add_u32 v110, v109, v106"); e("v_add_u32 v7, v110, v107")
e("v_mov_b32 v111, v7")
scan(7)
e("v_sub_u32 v108, v7, v111")
e("v_add_u32 v111, v108, v110"); e("v_add_u32 v110, v108, v109"); e("v_add_u32 v109, v108, v104")
for j in range(4): e("v_lshlrev_b32 v%d, 4, v%d" % (112 + j, 108 + j))
e("ds_write_b128 v6, v[112:115] offset:%d" % BASE)
e("v_readfirstlane_b32 s35, v0")
e("s_cmp_lg_u32 s35, 0"); e("s_cbranch_scc1 P_NOTW0")
for j in range(4): e("v_lshl_or_b32 v%d, v%d, 16, v%d" % (116 + j, 104 + j, 108 + j))
e("s_lshl_b32 s30, s2, 10"); e("s_add_u32 s30, s30, %d" % WS_DESC)
e("buffer_store_dwordx4 v[116:119], v6, s[24:27], s30 offen")
e("v_mov_b32 v120, %d" % TRASH); e("v_mov_b32 v121, -16")
for j in range(4):
    e("v_and_b32 v122, 1, v%d" % (100 + j)); e("v_cmp_eq_u32 vcc, 1, v122")
    e("v_lshl_add_u32 v122, v%d, 3, v%d" % (100 + j, 112 + j)); e("s_nop 0")
    e("v_cndmask_b32 v122, v121, v122, vcc"); e("v_add_u32 v122, %d, v122" % STG)
    e("ds_write_b32 v122, v120")
e("P_NOTW0:")
e("s_waitcnt lgkmcnt(0)")
stamp(2)
for i in range(20): e("ds_read_b32 v%d, v%d offset:%d" % (100 + i, VB + i, BASE))
for g in range(5):
    e("s_waitcnt vmcnt(%d)" % (8 - 2 * g))
    for j in range(4):
        i = 4 * g + j
        a = VA + 2 * g + j // 2
        t = 120 + 2 * j
        if j % 2 == 0: e("v_lshlrev_b32 v%d, 16, v%d" % (t, a))
        else: e("v_and_b32 v%d, s34, v%d" % (t, a))
        e("v_mul_f32 v%d, 0.15915494, v%d" % (t, t))
        e("v_fract_f32 v%d, v%d" % (t, t))
        e("v_add_f32 v%d, v%d, v%d" % (t + 1, t, t))
        e("v_cos_f32 v%d, v%d" % (t, t)); e("v_cos_f32 v%d, v%d" % (t + 1, t + 1))
        e("v_mul_hi_u32_u24 v6, s32, v%d" % (VI + i))
        e("v_cvt_pk_bf16_f32 v%d, v%d, v%d" % (t + 1, t, t + 1))
        e("v_lshl_add_u32 v6, v%d, 2, v6" % (VO + i))
        e("v_mad_i32_i24 v6, v%d, s33, v6" % (VB + i))
        e("v_lshl_add_u32 v%d, v%d, 14, v6" % (t, VI + i))
        if g == 0 and j == 0: e("s_waitcnt lgkmcnt(0)")
        e("v_lshl_add_u32 v%d, v%d, 3, v%d" % (VR + i, VR + i, 100 + i))
        e("ds_write_b64 v%d, v[%d:%d] offset:%d" % (VR + i, t, t + 1, STG))
e("s_waitcnt lgkmcnt(0)"); e("s_barrier")
stamp(3)
e("v_add_u32 v2, %d, v1" % (5 * 8192))
for g in range(10):
    e("ds_read_b128 v[%d:%d], v%d offset:%d" % (8 + 4 * g, 11 + 4 * g, 1 if g < 5 else 2, STG + (g % 5) * 8192))
e("s_mul_i32 s28, s2, %d" % CSTR)
for g in range(10):
    e("s_add_u32 s30, s28, %d" % (g * 8192))
    e("s_waitcnt lgkmcnt(%d)" % (9 - g))
    e("buffer_store_dwordx4 v[%d:%d], v1, s[24:27], s30 offen %s" % (8 + 4 * g, 11 + 4 * g, P["ST"]))
stamp(4)
e("s_cmp_ge_u32 s35, 128"); e("s_cbranch_scc1 P_FIN")
e("ds_read_b128 v[48:51], v2 offset:%d" % (STG + 5 * 8192))
e("s_add_u32 s30, s28, %d" % (10 * 8192))
e("s_waitcnt lgkmcnt(0)")
e("buffer_store_dwordx4 v[48:51], v1, s[24:27], s30 offen %s" % P["ST"])
e("P_FIN:"); stamp_out(0, 24, 35, -1)
e("P_EXIT:"); e("s_endpgm")
e("P_PREP:")
e("v_readfirstlane_b32 s35, v0"); e("s_cmp_lg_u32 s35, 0"); e("s_cbranch_scc1 P_EXIT")
e("s_load_dwordx8 s[4:11], s[0:1], 56")
e("s_load_dwordx2 s[36:37], s[0:1], 104")
e("v_and_b32 v1, 3, v0"); e("v_bfe_u32 v2, v0, 2, 1"); e("v_lshl_add_u32 v1, v2, 3, v1")
e("v_bfe_u32 v2, v0, 3, 1"); e("v_lshl_add_u32 v1, v2, 2, v1"); e("v_lshlrev_b32 v1, 1, v1")
e("v_bfe_u32 v2, v0, 4, 1"); e("v_lshrrev_b32 v3, 5, v0")
e("v_xor_b32 v4, 1, v2")
e("v_lshl_add_u32 v5, v3, 8, v1")
e("v_lshl_add_u32 v10, v2, 20, v5")
e("v_lshl_add_u32 v11, v4, 20, v5")
e("v_lshl_add_u32 v12, v2, 5, v1"); e("v_lshl_add_u32 v12, v3, 20, v12")
e("s_waitcnt lgkmcnt(0)")
srd(12, 4, 256); srd(16, 6, 512); srd(20, 8, 512); srd(24, 10, 512); srd(28, 36, WS_SZ)
imgs = [(10, 20, 32), (11, 20, 32), (12, 16, 64), (10, 24, 32), (11, 12, 32)]
for n, (va, s, st) in enumerate(imgs):
    for j in range(8):
        e("buffer_load_ushort v%d, v%d, s[%d:%d], 0 offen offset:%d" % (16 + 8 * n + j, va, s, s + 3, j * st))
e("v_lshlrev_b32 v1, 4, v0"); e("s_mov_b32 s3, %d" % WS_W)
e("s_waitcnt vmcnt(0)")
for n in range(5):
    for j in range(4):
        e("v_lshl_or_b32 v%d, v%d, 16, v%d" % (60 + 4 * n + j, 17 + 8 * n + 2 * j, 16 + 8 * n + 2 * j))
for n in range(5):
    e("buffer_store_dwordx4 v[%d:%d], v1, s[28:31], s3 offen" % (60 + 4 * n, 63 + 4 * n))
    e("s_add_u32 s3, s3, 1024")
e("s_endpgm")

D = P["D"]
ACC = 16; ROW = 48; CW = ROW + 8 * D; REC = CW + 2 * D; HD = REC + 4
UN = HD + 4
LNK = 48
PFV = max(UN + 8, 118); EV = PFV + 1; W = EV + 1; MM = W + 20; OA = MM + 8; NV2 = OA + 2
MORE = 10256
kstart("gath_kernel")
e("s_cmp_ge_u32 s2, 250"); e("s_cbranch_scc1 G_EXIT")
stamp(0)
e("s_lshr_b32 s63, s2, 3")
if P["XM"]:
    e("s_and_b32 s4, s2, 7"); e("s_min_u32 s5, s4, 2"); e("s_mul_i32 s4, s4, 31"); e("s_add_u32 s4, s4, s5"); e("s_add_u32 s2, s4, s63")
e("s_mul_i32 s63, s63, %d" % (((E * 32 // 128 // NQ + 31) // 32) * 128))
e("s_load_dwordx2 s[4:5], s[0:1], 0")
e("s_load_dwordx2 s[6:7], s[0:1], 24")
e("s_load_dwordx2 s[8:9], s[0:1], 88")
e("s_load_dwordx2 s[10:11], s[0:1], 104")
e("s_load_dwordx2 s[36:37], s[0:1], 40")
e("v_lshrrev_b32 v2, 6, v0"); e("v_and_b32 v4, 63, v0")
e("v_readfirstlane_b32 s3, v2")
e("v_lshlrev_b32 v1, 4, v4")
e("v_mul_u32_u24 v2, 25, v2"); e("v_add_u32 v2, v2, v4")
e("v_lshlrev_b32 v5, 10, v2"); e("v_mov_b32 v3, 0"); e("v_mov_b32 v15, 1")
e("s_lshl_b32 s30, s2, 2"); e("s_add_u32 s30, s30, %d" % WS_DESC)
e("s_waitcnt lgkmcnt(0)")
srd(24, 10, WS_SZ)
e("s_mov_b64 exec, 0x1ffffff")
e("buffer_load_dword v3, v5, s[24:27], s30 offen")
e("s_mov_b64 exec, -1")
e("s_load_dwordx4 s[40:43], s[36:37], 0")
srd(16, 4, E * 32); srd(20, 6, E * 2); srd(32, 8, E * 32)
e("s_mul_i32 s31, s2, 1280"); e("v_lshlrev_b32 v5, 1, v0")
e("buffer_load_ushort v%d, v5, s[20:23], s31 offen" % OA)
e("s_mov_b32 s31, %d" % WS_W)
for n in range(5):
    e("buffer_load_dwordx4 v[%d:%d], v1, s[24:27], s31 offen offset:%d" % (W + 4 * n, W + 4 * n + 3, 1024 * n if n < 4 else 0))
    if n == 3: e("s_add_u32 s31, s31, 4096")
e("s_mov_b32 s38, %d" % CSTR)
e("v_mul_lo_u32 v2, v2, s38")
for i in range(32): e("v_mov_b32 v%d, 0" % (ACC + i))
e("v_mov_b32 v5, 0xffffc000"); e("v_mov_b32 v6, %d" % RB)
e("ds_write2_b32 v6, v5, v16 offset0:0 offset1:1")
e("v_mov_b32 v6, %d" % MORE); e("ds_write_b32 v6, v16")
e("s_mov_b32 s44, 0")
e("s_mov_b32 s52, 0xffff0000"); e("s_movk_i32 s53, 0x3fff"); e("s_mov_b32 s54, 0x1fff8")
e("s_mul_i32 s55, s3, %d" % (CAPW * 8)); e("s_add_u32 s55, s55, %d" % (RB + 16))
e("s_lshl_b32 s45, s3, 8"); e("s_add_u32 s45, s45, %d" % SCR)
e("v_lshl_add_u32 v13, v4, 2, s45")
e("v_and_b32 v14, 1, v4"); e("v_lshlrev_b32 v14, 4, v14")
e("s_waitcnt vmcnt(6)")
e("v_and_b32 v5, 0xffff, v3"); e("v_lshl_add_u32 v2, v5, 4, v2"); e("v_lshrrev_b32 v3, 16, v3")
stamp(1)
e("G_ROUND:")
e("v_lshlrev_b32 v5, 4, v0")
for i in range(4): e("v_mov_b32 v%d, 0" % (8 + i))
e("ds_write_b32 v13, v8")
e("ds_write_b128 v5, v[8:11]")
e("v_lshlrev_b32 v5, 2, v0"); e("ds_write_b32 v5, v8 offset:%d" % CNT); e("ds_write_b32 v5, v8 offset:%d" % (BIN - 16))
e("v_mov_b32 v7, v3")
for sh in (1, 2, 4, 8):
    e("s_nop 1"); e("v_add_u32_dpp v7, v7, v7 row_shr:%d row_mask:0xf bank_mask:0xf bound_ctrl:0" % sh)
e("s_nop 1"); e("v_add_u32_dpp v7, v7, v7 row_bcast:15 row_mask:0xa bank_mask:0xf")
e("v_sub_u32 v6, v7, v3")
e("v_min_u32 v7, %d, v7" % (CAPW // 2)); e("v_min_u32 v6, %d, v6" % (CAPW // 2))
e("v_sub_u32 v8, v7, v6")
e("v_readlane_b32 s49, v7, 31")
e("v_cmp_lt_u32 vcc, 0, v8")
e("v_lshlrev_b32 v9, 4, v6"); e("v_sub_u32 v9, v2, v9")
e("v_mbcnt_lo_u32_b32 v10, vcc_lo, 0"); e("v_lshl_add_u32 v10, v10, 2, s45")
e("v_subrev_u32 v6, 1, v6")
e("v_lshlrev_b32 v11, v6, v15")
e("v_ashrrev_i32 v6, 5, v6"); e("v_lshl_add_u32 v6, v6, 2, s45")
e("s_mov_b64 exec, vcc")
e("ds_write_b32 v10, v9 offset:128")
e("ds_or_b32 v6, v11 offset:4")
e("s_mov_b64 exec, -1")
e("ds_read_b32 v6, v13 offset:4")
e("v_lshl_add_u32 v2, v8, 4, v2"); e("v_sub_u32 v3, v3, v8")
e("v_cmp_lt_u32 vcc, 0, v3")
e("s_add_u32 s50, s49, 63"); e("s_lshr_b32 s50, s50, 6")
e("s_mov_b32 s46, vcc_lo")
e("s_sub_u32 s51, 0, s49"); e("s_and_b32 s51, s51, 63"); e("s_lshr_b64 s[58:59], -1, s51")
e("s_lshr_b32 s47, s45, 2"); e("s_add_u32 s47, s47, 32")
e("s_waitcnt lgkmcnt(0)")
AD = 88; XR = 98
for i in range(10):
    e("v_readlane_b32 s60, v6, %d" % (2 * i)); e("v_readlane_b32 s61, v6, %d" % (2 * i + 1))
    e("v_mov_b32 v7, s47"); e("s_nop 0")
    e("v_mbcnt_lo_u32_b32 v7, s60, v7"); e("v_mbcnt_hi_u32_b32 v7, s61, v7")
    e("s_bcnt1_i32_b64 s48, s[60:61]"); e("v_lshlrev_b32 v7, 2, v7"); e("s_add_u32 s47, s47, s48")
    e("ds_read_b32 v%d, v7" % (AD + i))
e("s_mov_b32 s48, 0")
for i in range(10):
    e("s_waitcnt lgkmcnt(%d)" % (9 - i))
    e("v_add_u32 v%d, v%d, v1" % (AD + i, AD + i))
    if i % 4 == 0 and i: e("s_add_u32 s48, s48, 4096")
    e("s_cmp_gt_u32 s50, %d" % i); e("s_cselect_b64 exec, -1, 1")
    e("buffer_load_dwordx4 v[%d:%d], v%d, s[24:27], s48 offen offset:%d %s" % (LNK + 4 * i, LNK + 4 * i + 3, AD + i, (i % 4) * 1024, P["RL"].replace("+", " ")))
e("s_mov_b64 exec, -1")
e("G_F3:")
NAFT = 0
PFL = (E * 32 // 128 // NQ + 31) // 32
def prefetch():
    e("buffer_load_dword v12, v%d, s[16:19], s63 offen" % PFV)
    if P["PF"] > 1: e("s_add_u32 s63, s63, %d" % (E * 32 // NQ))
e("s_cmp_lg_u32 s44, 0"); e("s_cbranch_scc1 G_NORBF")
e("s_waitcnt vmcnt(15)")
e("v_lshlrev_b32 v6, 16, v%d" % OA)
e("s_mov_b32 s30, 0xc1200000"); e("s_mov_b32 s31, 0x3fb8aa3b")
for j in range(4):
    e("s_lshl_b32 s60, s%d, 16" % (40 + j)); e("s_and_b32 s61, s%d, 0xffff0000" % (40 + j))
    e("v_subrev_f32 v8, s60, v6"); e("v_subrev_f32 v9, s61, v6")
    def rnd():
        e("v_cvt_pk_bf16_f32 v9, v8, v9"); e("v_lshlrev_b32 v8, 16, v9"); e("v_and_b32 v9, s52, v9")
    rnd(); e("v_mul_f32 v8, v8, v8"); e("v_mul_f32 v9, v9, v9")
    rnd(); e("v_mul_f32 v8, s30, v8"); e("v_mul_f32 v9, s30, v9")
    rnd(); e("v_mul_f32 v8, s31, v8"); e("v_mul_f32 v9, s31, v9")
    e("v_exp_f32 v8, v8"); e("v_exp_f32 v9, v9"); e("s_nop 0")
    e("v_cvt_pk_bf16_f32 v%d, v8, v9" % (MM + j))
e("v_lshlrev_b32 v5, 4, v0")
e("ds_write_b128 v5, v[%d:%d] offset:%d" % (MM, MM + 3, RBL))
e("G_NORBF:")
stamp(2)
e("s_waitcnt lgkmcnt(0)"); e("s_barrier")
e("s_cmp_eq_u32 s46, 0"); e("s_cbranch_scc1 G_NOMORE")
e("s_add_u32 s30, s44, 1"); e("v_mov_b32 v5, s30"); e("v_mov_b32 v6, %d" % MORE); e("ds_max_u32 v6, v5")
e("G_NOMORE:")
e("v_add_u32 v5, s55, v1")
e("v_subrev_u32 v6, %d, v5" % RB); e("v_lshrrev_b32 v6, 3, v6")
for i in range(10):
    r = LNK + 4 * i
    e("s_cmp_le_u32 s50, %d" % i); e("s_cbranch_scc1 G_L1")
    e("s_cmp_eq_u32 s50, %d" % (i + 1)); e("s_cselect_b64 exec, s[58:59], -1")
    e("s_waitcnt vmcnt(%d)" % (9 - i + NAFT))
    e("v_and_b32 v8, s53, v%d" % r); e("v_and_b32 v9, s53, v%d" % (r + 2))
    e("v_and_b32 v10, -4, v8"); e("v_and_b32 v11, -4, v9")
    e("v_lshlrev_b32 v8, 2, v8"); e("v_lshlrev_b32 v9, 2, v9"); e("v_add_u32 v7, 1, v6")
    e("ds_wrxchg_rtn_b32 v%d, v8, v6" % (XR + 2 * i)); e("ds_wrxchg_rtn_b32 v%d, v9, v7" % (XR + 2 * i + 1))
    e("ds_add_u32 v10, v15 offset:%d" % CNT); e("ds_add_u32 v11, v15 offset:%d" % CNT)
    e("v_add_u32 v6, 128, v6")
e("G_L1:")
e("s_mov_b64 exec, -1")
if P["PF"]:
    e("v_lshlrev_b32 v%d, 7, v0" % PFV); e("v_cmp_gt_u32 vcc, %d, v0" % PFL); e("s_nop 1")
    e("v_cndmask_b32 v%d, -1, v%d, vcc" % (PFV, PFV)); e("v_lshrrev_b32 v7, 1, v%d" % PFV); e("v_cndmask_b32 v%d, v7, v%d, vcc" % (PFV, PFV))
    for _ in range(P["PF"]): prefetch()
e("s_waitcnt lgkmcnt(0)"); stamp(3)
for i in range(10):
    r = LNK + 4 * i
    e("s_cmp_le_u32 s50, %d" % i); e("s_cbranch_scc1 G_L2")
    e("v_bfi_b32 v%d, s53, v%d, v%d" % (r, XR + 2 * i, r)); e("v_bfi_b32 v%d, s53, v%d, v%d" % (r + 2, XR + 2 * i + 1, r + 2))
    e("ds_write_b128 v5, v[%d:%d] offset:%d" % (r, r + 3, 1024 * i))
e("G_L2:")
e("v_lshlrev_b32 v5, 2, v0")
e("s_waitcnt lgkmcnt(0)"); e("s_barrier")
e("s_cmp_lg_u32 s44, 0"); e("s_cbranch_scc1 G_SORTED")
e("ds_read_b32 v6, v5 offset:%d" % CNT)
e("s_waitcnt lgkmcnt(0)")
e("v_min_u32 v6, 63, v6"); e("v_lshlrev_b32 v6, 2, v6")
e("ds_add_rtn_u32 v7, v6, v15 offset:%d" % BIN)
e("v_lshlrev_b32 v8, 2, v4")
e("s_waitcnt lgkmcnt(0)"); e("s_barrier")
e("ds_read_b32 v9, v8 offset:%d" % BIN)
e("s_waitcnt lgkmcnt(0)")
e("v_mov_b32 v10, v9")
scan(10)
e("v_sub_u32 v10, v10, v9")
e("ds_bpermute_b32 v10, v6, v10")
MAP = str(P.get("MAP", "m7698325401"))[1:][::-1]
assert sorted(MAP) == list("0123456789")
e("s_mov_b32 s60, 0x%s" % MAP[2:]); e("s_movk_i32 s61, 0x%s" % MAP[:2]); e("s_lshl_b32 s48, s3, 2"); e("s_lshr_b64 s[60:61], s[60:61], s48")
e("s_and_b32 s60, s60, 15")
if P["PRI"]:
    th = {1: (4, 7, 9), 2: (7, 8, 9), 3: (4, 8, 99), 4: (2, 5, 8), 5: (8, 99, 99)}[P["PRI"]]
    for n, t in enumerate(th):
        e("s_cmp_lt_u32 s%d, %d" % (60 if P["PRI"] < 3 else 3, t)); e("s_cbranch_scc1 G_PR"); e("s_setprio %d" % (n + 1))
    e("G_PR:")
e("s_lshl_b32 s60, s60, 8")
e("s_waitcnt lgkmcnt(0)")
e("v_add_lshl_u32 v10, v10, v7, 2")
e("ds_write_b32 v10, v5 offset:%d" % PERM)
e("v_add_u32 v8, s60, v8")
e("s_waitcnt lgkmcnt(0)"); e("s_barrier")
e("ds_read_b32 v%d, v8 offset:%d" % (EV, PERM))
e("s_mul_i32 s39, s2, %d" % (640 * 32))
e("s_waitcnt lgkmcnt(0)")
e("v_lshlrev_b32 v%d, 3, v%d" % (OA, EV)); e("v_add_u32 v%d, 16, v%d" % (OA + 1, OA)); e("s_nop 1")
e("v_permlane32_swap_b32 v%d, v%d" % (OA, OA + 1))
for h in range(2): e("buffer_load_dwordx4 v[%d:%d], v%d, s[16:19], s39 offen" % (MM + 4 * h, MM + 4 * h + 3, OA + h))
e("G_SORTED:")
e("v_lshlrev_b32 v5, 2, v%d" % EV); e("v_mov_b32 v6, %d" % MORE)
e("ds_read_b128 v[%d:%d], v5" % (HD, HD + 3)); e("ds_read_b32 v6, v6"); e("ds_read_b32 v7, v%d offset:%d" % (EV, CNT))
e("s_waitcnt lgkmcnt(0)")
e("v_readlane_b32 s47, v7, 63")
e("s_mov_b32 s57, %d" % (NQ - 1)); e("s_mov_b32 s48, 0")
if P["BAR"] == 2:
    for n, t in enumerate(str(P.get("TH", "t6ae"))[1:]): e("s_mul_i32 s%d, s47, %d" % (49 + n, int(t, 16)))
    e("s_setprio 3")
e("v_readfirstlane_b32 s56, v6"); stamp(4)
for i in range(4): e("v_lshlrev_b32 v%d, 3, v%d" % (HD + i, HD + i))
SYNC = P["SYNC"]
if not SYNC:
    for k in range(NQ - 2, -1, -1):
        e("v_cmp_eq_u32 vcc, 0, v%d" % (HD + k)); e("s_nop 1")
        for j in range(k, NQ - 1): e("v_cndmask_b32 v%d, v%d, v%d, vcc" % (HD + j, HD + j, HD + j + 1))
        e("v_cndmask_b32 v%d, v%d, 0, vcc" % (HD + NQ - 1, HD + NQ - 1))
else:
    e("s_mov_b32 s57, %d" % (NQ - 1))
e("ds_read_b64 v[%d:%d], v%d offset:%d" % (REC, REC + 1, HD, RB))
def consume(k):
    for h in range(2):
        e("v_lshlrev_b32 v%d, 16, v%d" % (UN + 4, CW + 2 * k + h)); e("v_and_b32 v%d, s52, v%d" % (UN + 5, CW + 2 * k + h))
        for j in range(4):
            u = UN + 2 * (j % 2); r = ROW + 8 * k + 4 * h + j
            e("v_lshlrev_b32 v%d, 16, v%d" % (u, r)); e("v_and_b32 v%d, s52, v%d" % (u + 1, r))
            a = ACC + 8 * h + 2 * j
            if P["FM"] == 2: break
            e("v_pk_fma_f32 v[%d:%d], v[%d:%d], v[%d:%d], v[%d:%d] op_sel_hi:[1,0,1]" % (a, a + 1, u, u + 1, UN + 4, UN + 5, a, a + 1))
            a += 16
            e("v_pk_fma_f32 v[%d:%d], v[%d:%d], v[%d:%d], v[%d:%d] op_sel:[0,1,0]" % (a, a + 1, u, u + 1, UN + 4, UN + 5, a, a + 1))
QP = ["quad_perm:[0,0,2,2] row_mask:0xf bank_mask:0xf", "quad_perm:[1,1,3,3] row_mask:0xf bank_mask:0xf"]
def chase(k, par, tag):
    r = REC + 2 * par; n = REC + 2 * (par ^ 1)
    e("s_waitcnt lgkmcnt(0)")
    e("v_lshrrev_b32 v5, 9, v%d" % r); e("v_and_b32 v5, %s, v5" % (P["HACK"] * 32 if P.get("HACK") else "-32"))
    e("v_lshlrev_b32 v%d, 3, v%d" % (HD, r)); e("v_and_b32 v%d, s54, v%d" % (HD, HD))
    e("v_add_u32_dpp v6, v5, v14 " + QP[0]); e("v_add_u32_dpp v7, v5, v14 " + QP[1])
    e("buffer_load_dwordx4 v[%d:%d], v6, s[16:19], 0 offen" % (ROW + 8 * k, ROW + 8 * k + 3))
    e("buffer_load_dwordx4 v[%d:%d], v7, s[16:19], 0 offen" % (ROW + 8 * k + 4, ROW + 8 * k + 7))
    if not SYNC:
        e("v_cmp_eq_u32 vcc, 0, v%d" % HD);
        for h in range(2): e("v_mov_b32_dpp v%d, v%d " % (CW + 2 * k + h, r + 1) + QP[h])
        for j in range(NQ - 1): e("v_cndmask_b32 v%d, v%d, v%d, vcc" % (HD + j, HD + j, HD + j + 1))
        if NQ > 1: e("v_cndmask_b32 v%d, v%d, 0, vcc" % (HD + NQ - 1, HD + NQ - 1))
        e("v_cmp_ne_u32 vcc, 0, v%d" % HD)
        e("ds_read_b64 v[%d:%d], v%d offset:%d" % (n, n + 1, HD, RB))
        e("s_cbranch_vccz G_DR%s" % tag)
        if P["BAR"] == 2:
            e("s_add_u32 s48, s48, 16"); e("s_cmp_lt_u32 s48, s49"); e("s_cbranch_scc1 G_NB%s" % tag)
            e("s_setprio 2"); e("s_cmp_lt_u32 s48, s50"); e("s_cbranch_scc1 G_NB%s" % tag)
            e("s_setprio 1"); e("s_cmp_lt_u32 s48, s51"); e("s_cbranch_scc1 G_NB%s" % tag)
            e("s_setprio 0")
            e("G_NB%s:" % tag)
        elif P["BAR"]:
            e("s_add_u32 s48, s48, %d" % NQ); e("s_cmp_lt_u32 s48, s47"); e("s_cbranch_scc1 G_NB%s" % tag)
            e("s_cmp_eq_u32 s57, 0"); e("s_cbranch_scc1 G_NB%s" % tag)
            e("s_sub_u32 s48, s48, s47"); e("s_sub_u32 s57, s57, 1"); e("s_barrier")
            e("G_NB%s:" % tag)
    else:
        for h in range(2): e("v_mov_b32_dpp v%d, v%d " % (CW + 2 * k + h, r + 1) + QP[h])
        e("G_CK%s:" % tag)
        e("v_cmp_ne_u32 vcc, 0, v%d" % HD)
        e("s_cbranch_vccnz G_GO%s" % tag)
        e("s_cmp_eq_u32 s57, 0"); e("s_cbranch_scc1 G_DR%s" % tag)
        e("s_sub_u32 s57, s57, 1")
        if P["BAR"]: e("s_barrier")
        for j in range(NQ - 1): e("v_mov_b32 v%d, v%d" % (HD + j, HD + j + 1))
        e("s_branch G_CK%s" % tag)
        e("G_GO%s:" % tag)
        e("ds_read_b64 v[%d:%d], v%d offset:%d" % (n, n + 1, HD, RB))
assert D % 2 == 0
e("s_movk_i32 s62, 0x2000")
for k in range(D): chase(k, k % 2, "P%d" % k)
e("G_LOOP:")
for k in range(D):
    e("s_waitcnt vmcnt(%d)" % (2 * (D - 1)))
    consume(k)
    chase(k, k % 2, "L%d" % k)
e("s_sub_u32 s62, s62, 1"); e("s_cbranch_scc0 G_LOOP"); e("s_branch G_DRL%d" % (D - 1))
for k in range(D):
    e("G_DRP%d:" % k)
    for j in range(k + 1):
        e("s_waitcnt vmcnt(%d)" % (2 * (k - j))); consume(j)
    e("s_branch G_DONE")
for k in range(D):
    e("G_DRL%d:" % k)
    for j in range(D):
        e("s_waitcnt vmcnt(%d)" % (2 * (D - 1 - j))); consume((k + 1 + j) % D)
    e("s_branch G_DONE")
e("G_DONE:"); e("s_waitcnt lgkmcnt(0)")
if P["BAR"] == 1:
    e("s_cmp_eq_u32 s57, 0"); e("s_cbranch_scc1 G_DN2"); e("s_sub_u32 s57, s57, 1"); e("s_barrier"); e("s_branch G_DONE"); e("G_DN2:")
e("s_cmp_le_u32 s56, s44"); e("s_cbranch_scc1 G_EPI")
e("s_add_u32 s44, s44, 1"); e("s_waitcnt lgkmcnt(0)"); e("s_barrier")
e("s_branch G_ROUND")
e("G_EPI:"); stamp(5)
RBF = 48; HI = 56; DD = 72; G = 88; U = ACC + 16
e("v_lshlrev_b32 v5, 2, v%d" % EV)
e("ds_read_b128 v[%d:%d], v5 offset:%d" % (RBF, RBF + 3, RBL))
for j in range(16): e("v_cvt_pk_bf16_f32 v%d, v%d, v%d" % (HI + j, ACC + 2 * j, ACC + 2 * j + 1))
SW = "quad_perm:[1,0,3,2] row_mask:0xf bank_mask:0xf"
e("s_mov_b32 vcc_lo, 0x55555555"); e("s_mov_b32 vcc_hi, 0x55555555")
for j in range(4): e("v_mov_b32 v%d, 0" % (RBF + 4 + j))
for n, b in enumerate((HI, HI + 8)):
    for j in range(4): e("v_cndmask_b32_dpp v%d, v%d, v%d, vcc %s" % (ACC + 8 * n + j, b + 4 + j, b + j, SW))
e("s_not_b64 vcc, vcc")
for n, b in enumerate((HI, HI + 8)):
    for j in range(4): e("v_cndmask_b32_dpp v%d, v%d, v%d, vcc %s" % (ACC + 8 * n + 4 + j, b + j, b + 4 + j, SW))
HI = ACC
e("s_waitcnt lgkmcnt(0)")
for j in range(4): e("v_permlane32_swap_b32 v%d, v%d" % (RBF + j, RBF + 4 + j))
for b in (HI, HI + 8):
    for j in range(4): e("v_permlane32_swap_b32 v%d, v%d" % (b + j, b + 4 + j))
def mf(d, a, b, c):
    e("v_mfma_f32_32x32x16_bf16 v[%d:%d], v[%d:%d], v[%d:%d], %s" % (d, d + 15, a, a + 3, b, b + 3, c if c == "0" else "v[%d:%d]" % (c, c + 15)))
for h in range(2):
    e("s_nop 1")
    mf(DD, W, HI + 4 * h, "0"); mf(G, W + 8, RBF + 4 * h, "0")
    mf(DD, W + 4, HI + 8 + 4 * h, DD)
    mf(U, W + 16, RBF + 4 * h, "0")
    e("s_nop 11")
    for j in range(4):
        e("v_pk_mul_f32 v[%d:%d], v[%d:%d], v[%d:%d]" % (G + 2 * j, G + 2 * j + 1, G + 2 * j, G + 2 * j + 1, DD + 2 * j, DD + 2 * j + 1))
    for j in range(4):
        e("v_pk_fma_f32 v[%d:%d], v[%d:%d], v[%d:%d], v[%d:%d]" % (G + 2 * j, G + 2 * j + 1, G + 8 + 2 * j, G + 9 + 2 * j, DD + 8 + 2 * j, DD + 9 + 2 * j, G + 2 * j, G + 2 * j + 1))
    for j in range(4): e("v_cvt_pk_bf16_f32 v%d, v%d, v%d" % (DD + j, G + 2 * j, G + 2 * j + 1))
    e("s_nop 1")
    mf(U, W + 12, DD, U)
    for j in range(4):
        m = MM + 4 * h + j
        e("v_lshlrev_b32 v%d, 16, v%d" % (G + 2 * j, m)); e("v_and_b32 v%d, s52, v%d" % (G + 2 * j + 1, m))
    e("s_nop 7")
    for j in range(4):
        e("v_pk_fma_f32 v[%d:%d], v[%d:%d], v[%d:%d], v[%d:%d]" % (G + 2 * j, G + 2 * j + 1, U + 2 * j, U + 2 * j + 1, U + 8 + 2 * j, U + 9 + 2 * j, G + 2 * j, G + 2 * j + 1))
    for j in range(4): e("v_cvt_pk_bf16_f32 v%d, v%d, v%d" % (MM + 4 * h + j, G + 2 * j, G + 2 * j + 1))
    e("buffer_store_dwordx4 v[%d:%d], v%d, s[32:35], s39 offen %s" % (MM + 4 * h, MM + 4 * h + 3, OA + h, P.get("OS", "")))
stamp(6); stamp_out(1, 24, 3, 5)
e("G_EXIT:"); e("s_endpgm")
e('.section .rodata,"a"')
for n, nv in (("part_kernel", 128), ("gath_kernel", NV2)):
    nv = (nv + 3) // 4 * 4
    e(".p2align 6"); e(".amdhsa_kernel %s" % n)
    e("  .amdhsa_next_free_vgpr %d" % nv); e("  .amdhsa_next_free_sgpr 80"); e("  .amdhsa_accum_offset %d" % nv)
    e("  .amdhsa_group_segment_fixed_size 0"); e("  .amdhsa_kernarg_size 112"); e("  .amdhsa_user_sgpr_count 2")
    e("  .amdhsa_user_sgpr_kernarg_segment_ptr 1"); e("  .amdhsa_system_sgpr_workgroup_id_x 1"); e(".end_amdhsa_kernel")
open(sys.argv[1], "w").write("\n".join(out) + "\n")
```

```python
import sys, struct
P = dict(D=4, ORD=1, SYNC=0, NQ=4, PF=1, ST="nt", LD="nt", PFN=1, XM=1, FM=0, RL="nt", BAR=2, PRI=0)
for a in sys.argv[2:]:
    k, v = a.split("=")
    P[k] = int(v) if v.lstrip("-").isdigit() else v
out = []
def e(s=""): out.append(s)
NAME = "gather_scatter__molecular_angular_gemnet__graph"
E, T = 160000, 2560000
NCH, CH = 250, 10240
NB, BE = 250, 640
CSTR = 63488
WS_DESC = NCH * CSTR
WS_W = WS_DESC + NCH * 1024
WS_SZ = WS_W + 5 * 1024
M640 = (2**32 + 639) // 640
NQ = P["NQ"]
MQ = (2**32 * NQ) // E
assert (E - 1) * MQ >> 32 == NQ - 1 and MQ < 2**24
TRASH = 2560
hdr = open("cdna_kernels/%s.s.ref" % NAME).read().split("; Override")[0]
e(hdr.rstrip())
L1 = max(CSTR + 2048 + 16, P.get("L1", 83968))
CAPW = 1280
SCR = 10272
CNT = SCR + 2576; BIN = CNT + 2576; PERM = BIN + 256
RBL = PERM + 2560
RB = RBL + 10240
L2 = RB + 16 + 10 * CAPW * 8
e("; @launch kernel=part_kernel grid=(251,1,1) block=(512,1,1) lds=%d" % L1)
e("; @launch kernel=gath_kernel grid=(250,1,1) block=(640,1,1) lds=%d" % L2)
e('.amdgcn_target "amdgcn-amd-amdhsa--gfx950"')
e(".text")
def srd(d, b, size, stride=0):
    e("s_mov_b32 s%d, s%d" % (d, b))
    if stride: e("s_or_b32 s%d, s%d, 0x%x" % (d + 1, b + 1, stride << 16))
    else: e("s_mov_b32 s%d, s%d" % (d + 1, b + 1))
    e("s_mov_b32 s%d, %d" % (d + 2, size))
    e("s_mov_b32 s%d, 0x00020000" % (d + 3))
def scan(v):
    for sh in (1, 2, 4, 8):
        e("s_nop 1")
        e("v_add_u32_dpp v%d, v%d, v%d row_shr:%d row_mask:0xf bank_mask:0xf bound_ctrl:0" % (v, v, v, sh))
    e("s_nop 1")
    e("v_add_u32_dpp v%d, v%d, v%d row_bcast:15 row_mask:0xa bank_mask:0xf" % (v, v, v))
    e("s_nop 1")
    e("v_add_u32_dpp v%d, v%d, v%d row_bcast:31 row_mask:0xc bank_mask:0xf" % (v, v, v))
WS_ST = 32 << 20
def stamp(i):
    if P.get("STAMP"):
        e("s_waitcnt lgkmcnt(0)"); e("s_memrealtime s[%d:%d]" % (64 + 2 * i, 65 + 2 * i)); e("s_waitcnt lgkmcnt(0)")
def stamp_out(k, srd0, wreg, sh):
    if P.get("STAMP"):
        e("s_waitcnt vmcnt(0)"); stamp(7)
        for i in range(8): e("v_mov_b32 v%d, s%d" % (8 + i, 64 + 2 * i))
        e("s_lshl_b32 s63, s2, 9"); e("s_lshl_b32 s62, s%d, %d" % (wreg, sh)) if sh >= 0 else e("s_lshr_b32 s62, s%d, %d" % (wreg, -sh))
        e("s_add_u32 s63, s63, s62"); e("s_add_u32 s63, s63, %d" % (WS_ST + k * (1 << 20)))
        e("s_mov_b32 s%d, 0x8000000" % (srd0 + 2)); e("v_mov_b32 v7, 0"); e("s_mov_b64 exec, 1")
        e("buffer_store_dwordx4 v[8:11], v7, s[%d:%d], s63 offen" % (srd0, srd0 + 3))
        e("buffer_store_dwordx4 v[12:15], v7, s[%d:%d], s63 offen offset:16" % (srd0, srd0 + 3))
def kstart(n):
    e(".globl %s" % n); e(".p2align 8"); e(".type %s,@function" % n); e("%s:" % n)

HIST, BASE, STG = 0, 1024, 2064
kstart("part_kernel")
e("s_cmp_ge_u32 s2, 251"); e("s_cbranch_scc1 P_EXIT")
e("s_cmp_eq_u32 s2, 250"); e("s_cbranch_scc1 P_PREP")
stamp(0)
e("s_load_dwordx4 s[4:7], s[0:1], 8")
e("s_load_dwordx2 s[8:9], s[0:1], 32")
e("s_load_dwordx2 s[10:11], s[0:1], 104")
e("v_lshlrev_b32 v1, 4, v0"); e("v_lshlrev_b32 v2, 3, v0"); e("v_lshlrev_b32 v3, 2, v0")
e("v_mov_b32 v4, 0"); e("v_mov_b32 v5, 1")
e("ds_write_b32 v3, v4")
e("s_mul_i32 s28, s2, %d" % (CH * 4)); e("s_mul_i32 s29, s2, %d" % (CH * 2))
e("s_waitcnt lgkmcnt(0)")
srd(12, 4, T * 4); srd(16, 6, T * 4); srd(20, 8, T * 2); srd(24, 10, WS_SZ)
VO, VI, VA, VR = 8, 28, 48, 60
VB = 80
LD = P["LD"].replace("+"," "); P["ST"] = P["ST"].replace("+"," ")
for g in range(5):
    e("s_add_u32 s30, s28, %d" % (g * 8192))
    e("buffer_load_dwordx4 v[%d:%d], v1, s[16:19], s30 offen %s" % (VO + 4 * g, VO + 4 * g + 3, LD))
def ldai(g):
    e("s_add_u32 s30, s29, %d" % (g * 4096))
    e("buffer_load_dwordx2 v[%d:%d], v2, s[20:23], s30 offen %s" % (VA + 2 * g, VA + 2 * g + 1, LD))
    e("s_add_u32 s30, s28, %d" % (g * 8192))
    e("buffer_load_dwordx4 v[%d:%d], v1, s[12:15], s30 offen %s" % (VI + 4 * g, VI + 4 * g + 3, LD))
NPRE = {0: 5, 1: 0, 2: 1, 3: 2}[P["ORD"]]
for g in range(NPRE): ldai(g)
e("s_mov_b32 s31, %d" % M640); e("s_mov_b32 s32, %d" % MQ); e("s_mov_b32 s33, -640")
e("s_mov_b32 s34, 0xffff0000")
e("s_barrier")
for g in range(5):
    e("s_waitcnt vmcnt(%d)" % (4 - g + 2 * min(5, NPRE + g)))
    if NPRE + g < 5: ldai(NPRE + g)
    for j in range(4):
        i = 4 * g + j
        e("v_mul_hi_u32_u24 v%d, s31, v%d" % (VB + i, VO + i))
        e("v_lshlrev_b32 v%d, 2, v%d" % (VB + i, VB + i))
        e("ds_add_rtn_u32 v%d, v%d, v5" % (VR + i, VB + i))
e("v_and_b32 v6, 63, v0"); e("v_lshlrev_b32 v6, 4, v6")
e("s_waitcnt lgkmcnt(0)"); e("s_barrier")
stamp(1)
e("ds_read_b128 v[100:103], v6")
e("s_waitcnt lgkmcnt(0)")
for j in range(4):
    e("v_add_u32 v%d, 1, v%d" % (104 + j, 100 + j)); e("v_lshrrev_b32 v%d, 1, v%d" % (104 + j, 104 + j))
e("v_add_u32 v109, v104, v105"); e("v_add_u32 v110, v109, v106"); e("v_add_u32 v7, v110, v107")
e("v_mov_b32 v111, v7")
scan(7)
e("v_sub_u32 v108, v7, v111")
e("v_add_u32 v111, v108, v110"); e("v_add_u32 v110, v108, v109"); e("v_add_u32 v109, v108, v104")
for j in range(4): e("v_mul_u32_u24 v%d, 12, v%d" % (112 + j, 108 + j))
e("ds_write_b128 v6, v[112:115] offset:%d" % BASE)
e("v_readfirstlane_b32 s35, v0")
e("s_cmp_lg_u32 s35, 0"); e("s_cbranch_scc1 P_NOTW0")
for j in range(4): e("v_lshl_or_b32 v%d, v%d, 16, v%d" % (116 + j, 104 + j, 108 + j))
e("s_lshl_b32 s30, s2, 10"); e("s_add_u32 s30, s30, %d" % WS_DESC)
e("buffer_store_dwordx4 v[116:119], v6, s[24:27], s30 offen")
e("v_mov_b32 v120, %d" % TRASH); e("v_mov_b32 v121, -14")
for j in range(4):
    e("v_and_b32 v122, 1, v%d" % (100 + j)); e("v_cmp_eq_u32 vcc, 1, v122")
    e("v_mad_u32_u24 v122, v%d, 6, v%d" % (100 + j, 112 + j)); e("s_nop 0")
    e("v_cndmask_b32 v122, v121, v122, vcc"); e("v_add_u32 v122, %d, v122" % (STG + 2))
    e("ds_write_b32 v122, v120")
e("P_NOTW0:")
e("s_waitcnt lgkmcnt(0)")
stamp(2)
for i in range(20): e("ds_read_b32 v%d, v%d offset:%d" % (100 + i, VB + i, BASE))
for g in range(5):
    e("s_waitcnt vmcnt(%d)" % (8 - 2 * g))
    for j in range(4):
        i = 4 * g + j
        a = VA + 2 * g + j // 2
        t = 120 + 2 * j
        e("v_mul_hi_u32_u24 v6, s32, v%d" % (VI + i))
        e("v_lshl_add_u32 v6, v%d, 2, v6" % (VO + i))
        e("v_mad_i32_i24 v6, v%d, s33, v6" % (VB + i))
        e("v_lshl_add_u32 v%d, v%d, 14, v6" % (t, VI + i))
        if g == 0 and j == 0: e("s_waitcnt lgkmcnt(0)")
        e("v_mad_u32_u24 v%d, v%d, 6, v%d" % (VR + i, VR + i, 100 + i))
        e("v_and_b32 v6, 2, v%d" % (VR + i)); e("v_add_u32 v%d, v6, v%d" % (t + 1, VR + i))
        e("v_mad_i32_i24 v%d, v6, -2, v%d" % (VR + i, VR + i))
        e("ds_write_b32 v%d, v%d offset:%d" % (t + 1, t, STG))
        e("ds_write_b16%s v%d, v%d offset:%d" % (("", "_d16_hi")[j % 2], VR + i, a, STG + 4))
e("s_waitcnt lgkmcnt(0)"); e("s_barrier")
stamp(3)
for g in range(7):
    e("ds_read_b128 v[%d:%d], v1 offset:%d" % (8 + 4 * g, 11 + 4 * g, STG + g * 8192))
e("s_mul_i32 s28, s2, %d" % CSTR)
for g in range(7):
    e("s_add_u32 s30, s28, %d" % (g * 8192))
    e("s_waitcnt lgkmcnt(%d)" % (6 - g))
    e("buffer_store_dwordx4 v[%d:%d], v1, s[24:27], s30 offen %s" % (8 + 4 * g, 11 + 4 * g, P["ST"]))
stamp(4)
e("s_cmp_ge_u32 s35, 384"); e("s_cbranch_scc1 P_FIN")
e("ds_read_b128 v[48:51], v1 offset:%d" % (STG + 7 * 8192))
e("s_add_u32 s30, s28, %d" % (7 * 8192))
e("s_waitcnt lgkmcnt(0)")
e("buffer_store_dwordx4 v[48:51], v1, s[24:27], s30 offen %s" % P["ST"])
e("P_FIN:"); stamp_out(0, 24, 35, -1)
e("P_EXIT:"); e("s_endpgm")
e("P_PREP:")
e("v_readfirstlane_b32 s35, v0"); e("s_cmp_lg_u32 s35, 0"); e("s_cbranch_scc1 P_EXIT")
e("s_load_dwordx8 s[4:11], s[0:1], 56")
e("s_load_dwordx2 s[36:37], s[0:1], 104")
e("v_and_b32 v1, 3, v0"); e("v_bfe_u32 v2, v0, 2, 1"); e("v_lshl_add_u32 v1, v2, 3, v1")
e("v_bfe_u32 v2, v0, 3, 1"); e("v_lshl_add_u32 v1, v2, 2, v1"); e("v_lshlrev_b32 v1, 1, v1")
e("v_bfe_u32 v2, v0, 4, 1"); e("v_lshrrev_b32 v3, 5, v0")
e("v_xor_b32 v4, 1, v2")
e("v_lshl_add_u32 v5, v3, 8, v1")
e("v_lshl_add_u32 v10, v2, 20, v5")
e("v_lshl_add_u32 v11, v4, 20, v5")
e("v_lshl_add_u32 v12, v2, 5, v1"); e("v_lshl_add_u32 v12, v3, 20, v12")
e("s_waitcnt lgkmcnt(0)")
srd(12, 4, 256); srd(16, 6, 512); srd(20, 8, 512); srd(24, 10, 512); srd(28, 36, WS_SZ)
imgs = [(10, 20, 32), (11, 20, 32), (12, 16, 64), (10, 24, 32), (11, 12, 32)]
for n, (va, s, st) in enumerate(imgs):
    for j in range(8):
        e("buffer_load_ushort v%d, v%d, s[%d:%d], 0 offen offset:%d" % (16 + 8 * n + j, va, s, s + 3, j * st))
e("v_lshlrev_b32 v1, 4, v0"); e("s_mov_b32 s3, %d" % WS_W)
e("s_waitcnt vmcnt(0)")
for n in range(5):
    for j in range(4):
        e("v_lshl_or_b32 v%d, v%d, 16, v%d" % (60 + 4 * n + j, 17 + 8 * n + 2 * j, 16 + 8 * n + 2 * j))
for n in range(5):
    e("buffer_store_dwordx4 v[%d:%d], v1, s[28:31], s3 offen" % (60 + 4 * n, 63 + 4 * n))
    e("s_add_u32 s3, s3, 1024")
e("s_endpgm")

D = P["D"]
ACC = 16; ROW = 48; CW = ROW + 8 * D; REC = CW + D; HD = REC + 2 * D
UN = HD + 4
LNK = 48
PFV = max(UN + 16, 118); EV = PFV + 1; W = EV + 1; MM = W + 20; OA = MM + 8; NV2 = OA + 2
MORE = 10256
kstart("gath_kernel")
e("s_cmp_ge_u32 s2, 250"); e("s_cbranch_scc1 G_EXIT")
stamp(0)
e("s_lshr_b32 s63, s2, 3")
if P["XM"]:
    e("s_and_b32 s4, s2, 7"); e("s_min_u32 s5, s4, 2"); e("s_mul_i32 s4, s4, 31"); e("s_add_u32 s4, s4, s5"); e("s_add_u32 s2, s4, s63")
e("s_mul_i32 s63, s63, %d" % (((E * 32 // 128 // P.get("PFQ", NQ) + 31) // 32) * 128))
e("s_load_dwordx2 s[4:5], s[0:1], 0")
e("s_load_dwordx2 s[6:7], s[0:1], 24")
e("s_load_dwordx2 s[8:9], s[0:1], 88")
e("s_load_dwordx2 s[10:11], s[0:1], 104")
e("s_load_dwordx2 s[36:37], s[0:1], 40")
e("v_lshrrev_b32 v2, 6, v0"); e("v_and_b32 v4, 63, v0")
e("v_readfirstlane_b32 s3, v2")
e("v_lshlrev_b32 v1, 4, v4")
e("v_mul_u32_u24 v2, 25, v2"); e("v_add_u32 v2, v2, v4")
e("v_lshlrev_b32 v5, 10, v2"); e("v_mov_b32 v3, 0"); e("v_mov_b32 v15, 1")
e("s_lshl_b32 s30, s2, 2"); e("s_add_u32 s30, s30, %d" % WS_DESC)
e("s_waitcnt lgkmcnt(0)")
srd(24, 10, WS_SZ)
e("s_mov_b64 exec, 0x1ffffff")
e("buffer_load_dword v3, v5, s[24:27], s30 offen")
e("s_mov_b64 exec, -1")
e("s_load_dwordx4 s[40:43], s[36:37], 0")
srd(16, 4, E * 32); srd(20, 6, E * 2); srd(32, 8, E * 32)
PFQ = P.get("PFQ", NQ)
PFL = (E * 32 // 128 // PFQ + 31) // 32
def prefetch():
    e("buffer_load_dword v12, v%d, s[16:19], 0 offen" % PFV)
    e("v_add_u32 v%d, %d, v%d" % (PFV, PFL * 32 * 128, PFV))
e("v_cmp_gt_u32 vcc, %d, v0" % PFL)
e("v_lshl_add_u32 v7, v0, 7, s63"); e("v_bfrev_b32 v%d, 1" % PFV); e("v_cndmask_b32 v%d, v%d, v7, vcc" % (PFV, PFV))
PF0 = P.get("PF0", 0)
if P.get("B0", 1): e("s_barrier")
for _ in range(PF0): prefetch()
e("s_mul_i32 s31, s2, 1280"); e("v_lshlrev_b32 v5, 1, v0")
e("buffer_load_ushort v%d, v5, s[20:23], s31 offen" % OA)
e("s_mov_b32 s31, %d" % WS_W)
for n in range(5):
    e("buffer_load_dwordx4 v[%d:%d], v1, s[24:27], s31 offen offset:%d" % (W + 4 * n, W + 4 * n + 3, 1024 * n if n < 4 else 0))
    if n == 3: e("s_add_u32 s31, s31, 4096")
e("s_mov_b32 s38, %d" % CSTR)
e("v_mul_lo_u32 v2, v2, s38")
for i in range(32): e("v_mov_b32 v%d, 0" % (ACC + i))
e("v_mov_b32 v5, 0xffffc000"); e("v_mov_b32 v6, %d" % RB)
e("ds_write2_b32 v6, v5, v16 offset0:0 offset1:1")
e("v_mov_b32 v6, %d" % MORE); e("ds_write_b32 v6, v16")
e("s_mov_b32 s44, 0")
e("v_mov_b32 v%d, 0" % EV); e("v_mov_b32 v%d, 0" % (OA + 1)); e("s_mul_i32 s39, s2, %d" % (640 * 32))
e("s_mov_b32 s52, 0xffff0000"); e("s_movk_i32 s53, 0x3fff"); e("s_mov_b32 s54, 0x1fff8")
e("s_mul_i32 s55, s3, %d" % (CAPW * 8)); e("s_add_u32 s55, s55, %d" % (RB + 16))
e("s_lshl_b32 s45, s3, 8"); e("s_add_u32 s45, s45, %d" % SCR)
e("v_lshl_add_u32 v13, v4, 2, s45")
e("v_and_b32 v14, 1, v4"); e("v_lshlrev_b32 v14, 4, v14")
e("s_waitcnt vmcnt(%d)" % (6 + PF0))
e("v_and_b32 v5, 0xffff, v3"); e("v_mad_u32_u24 v2, v5, 12, v2"); e("v_lshrrev_b32 v3, 16, v3")
stamp(1)
e("G_ROUND:")
e("v_lshlrev_b32 v5, 4, v0")
for i in range(4): e("v_mov_b32 v%d, 0" % (8 + i))
e("ds_write_b32 v13, v8")
e("ds_write_b128 v5, v[8:11]")
e("v_lshlrev_b32 v5, 2, v0"); e("ds_write_b32 v5, v8 offset:%d" % CNT); e("ds_write_b32 v5, v8 offset:%d" % (BIN - 16))
e("v_mov_b32 v7, v3")
for sh in (1, 2, 4, 8):
    e("s_nop 1"); e("v_add_u32_dpp v7, v7, v7 row_shr:%d row_mask:0xf bank_mask:0xf bound_ctrl:0" % sh)
e("s_nop 1"); e("v_add_u32_dpp v7, v7, v7 row_bcast:15 row_mask:0xa bank_mask:0xf")
e("v_sub_u32 v6, v7, v3")
e("v_min_u32 v7, %d, v7" % (CAPW // 2)); e("v_min_u32 v6, %d, v6" % (CAPW // 2))
e("v_sub_u32 v8, v7, v6")
e("v_readlane_b32 s49, v7, 31")
e("v_cmp_lt_u32 vcc, 0, v8")
e("v_mul_u32_u24 v9, 12, v6"); e("v_sub_u32 v9, v2, v9")
e("v_mbcnt_lo_u32_b32 v10, vcc_lo, 0"); e("v_lshl_add_u32 v10, v10, 2, s45")
e("v_subrev_u32 v6, 1, v6")
e("v_lshlrev_b32 v11, v6, v15")
e("v_ashrrev_i32 v6, 5, v6"); e("v_lshl_add_u32 v6, v6, 2, s45")
e("s_mov_b64 exec, vcc")
e("ds_write_b32 v10, v9 offset:128")
e("ds_or_b32 v6, v11 offset:4")
e("s_mov_b64 exec, -1")
e("ds_read_b32 v6, v13 offset:4")
e("v_mad_u32_u24 v2, v8, 12, v2"); e("v_sub_u32 v3, v3, v8")
e("v_cmp_lt_u32 vcc, 0, v3")
e("s_add_u32 s50, s49, 63"); e("s_lshr_b32 s50, s50, 6")
e("s_mov_b32 s46, vcc_lo")
e("s_sub_u32 s51, 0, s49"); e("s_and_b32 s51, s51, 63"); e("s_lshr_b64 s[58:59], -1, s51")
e("s_lshr_b32 s47, s45, 2"); e("s_add_u32 s47, s47, 32")
e("s_waitcnt lgkmcnt(0)")
AD = 88; XR = 98
for i in range(10):
    e("v_readlane_b32 s60, v6, %d" % (2 * i)); e("v_readlane_b32 s61, v6, %d" % (2 * i + 1))
    e("v_mov_b32 v7, s47"); e("s_nop 0")
    e("v_mbcnt_lo_u32_b32 v7, s60, v7"); e("v_mbcnt_hi_u32_b32 v7, s61, v7")
    e("s_bcnt1_i32_b64 s48, s[60:61]"); e("v_lshlrev_b32 v7, 2, v7"); e("s_add_u32 s47, s47, s48")
    e("ds_read_b32 v%d, v7" % (AD + i))
e("s_mov_b32 s48, 0")
for i in range(10):
    e("s_waitcnt lgkmcnt(%d)" % (9 - i))
    e("v_mad_u32_u24 v%d, v4, 12, v%d" % (AD + i, AD + i))
    if i == 5: e("s_add_u32 s48, s48, %d" % (5 * 768))
    e("s_cmp_gt_u32 s50, %d" % i); e("s_cselect_b64 exec, -1, 1")
    e("buffer_load_dwordx3 v[%d:%d], v%d, s[24:27], s48 offen offset:%d %s" % (LNK + 4 * i, LNK + 4 * i + 2, AD + i, (i % 5) * 768, P["RL"].replace("+", " ")))
e("s_mov_b64 exec, -1")
e("G_F3:")
NAFT = 0
e("s_cmp_lg_u32 s44, 0"); e("s_cbranch_scc1 G_NORBF")
e("s_waitcnt vmcnt(15)")
e("v_lshlrev_b32 v6, 16, v%d" % OA)
e("s_mov_b32 s30, 0xc1200000"); e("s_mov_b32 s31, 0x3fb8aa3b")
for j in range(4):
    e("s_lshl_b32 s60, s%d, 16" % (40 + j)); e("s_and_b32 s61, s%d, 0xffff0000" % (40 + j))
    e("v_subrev_f32 v8, s60, v6"); e("v_subrev_f32 v9, s61, v6")
    def rnd():
        e("v_cvt_pk_bf16_f32 v9, v8, v9"); e("v_lshlrev_b32 v8, 16, v9"); e("v_and_b32 v9, s52, v9")
    rnd(); e("v_mul_f32 v8, v8, v8"); e("v_mul_f32 v9, v9, v9")
    rnd(); e("v_mul_f32 v8, s30, v8"); e("v_mul_f32 v9, s30, v9")
    rnd(); e("v_mul_f32 v8, s31, v8"); e("v_mul_f32 v9, s31, v9")
    e("v_exp_f32 v8, v8"); e("v_exp_f32 v9, v9"); e("s_nop 0")
    e("v_cvt_pk_bf16_f32 v%d, v8, v9" % (MM + j))
e("v_lshlrev_b32 v5, 4, v0")
e("ds_write_b128 v5, v[%d:%d] offset:%d" % (MM, MM + 3, RBL))
e("G_NORBF:")
stamp(2)
e("s_waitcnt lgkmcnt(0)"); e("s_barrier")
e("s_cmp_eq_u32 s46, 0"); e("s_cbranch_scc1 G_NOMORE")
e("s_add_u32 s30, s44, 1"); e("v_mov_b32 v5, s30"); e("v_mov_b32 v6, %d" % MORE); e("ds_max_u32 v6, v5")
e("G_NOMORE:")
e("v_add_u32 v5, s55, v1")
e("v_subrev_u32 v6, %d, v5" % RB); e("v_lshrrev_b32 v6, 3, v6")
e("s_mov_b32 s30, 0x3e22f983"); e("s_mov_b32 s31, s30"); e("s_mov_b32 s60, -1.0"); e("s_mov_b32 s61, -1.0")
def lwrite(i):
    r = LNK + 4 * i
    e("v_bfi_b32 v%d, s53, v%d, v%d" % (r, XR + 2 * i, r)); e("v_bfi_b32 v%d, s53, v%d, v%d" % (r + 2, XR + 2 * i + 1, r + 2))
    e("ds_write_b128 v5, v[%d:%d] offset:%d" % (r, r + 3, 1024 * i))
for i in range(10):
    r = LNK + 4 * i
    e("s_cmp_le_u32 s50, %d" % i); e("s_cbranch_scc1 G_LE%d" % i)
    e("s_cmp_eq_u32 s50, %d" % (i + 1)); e("s_cselect_b64 exec, s[58:59], -1")
    e("s_waitcnt vmcnt(%d)" % (9 - i))
    e("v_and_b32 v8, s53, v%d" % r); e("v_and_b32 v9, s53, v%d" % (r + 2))
    e("v_and_b32 v10, -4, v8"); e("v_and_b32 v11, -4, v9")
    e("v_lshlrev_b32 v8, 2, v8"); e("v_lshlrev_b32 v9, 2, v9"); e("v_add_u32 v7, 1, v6")
    e("ds_wrxchg_rtn_b32 v%d, v8, v6" % (XR + 2 * i)); e("ds_wrxchg_rtn_b32 v%d, v9, v7" % (XR + 2 * i + 1))
    e("ds_add_u32 v10, v15 offset:%d" % CNT); e("ds_add_u32 v11, v15 offset:%d" % CNT)
    e("s_mov_b64 exec, -1")
    e("v_lshlrev_b32 v8, 16, v%d" % (r + 1)); e("v_and_b32 v9, s52, v%d" % (r + 1))
    e("v_pk_mul_f32 v[8:9], v[8:9], s[30:31]")
    e("v_cos_f32 v8, v8"); e("v_cos_f32 v9, v9")
    e("v_add_u32 v6, 128, v6")
    e("v_pk_add_f32 v[10:11], v[8:9], v[8:9]")
    e("v_pk_fma_f32 v[10:11], v[10:11], v[8:9], s[60:61]")
    e("v_cvt_pk_bf16_f32 v%d, v8, v10" % (r + 1)); e("v_cvt_pk_bf16_f32 v%d, v9, v11" % (r + 3))
    if i: e("s_waitcnt lgkmcnt(4)"); lwrite(i - 1)
for i in range(10, 0, -1):
    e("G_LE%d:" % i); e("s_waitcnt lgkmcnt(0)"); lwrite(i - 1)
    if i > 1: e("s_branch G_LE0")
e("G_LE0:")
for _ in range(P["PF"]): prefetch()
stamp(3)
e("v_lshlrev_b32 v5, 2, v0")
e("s_waitcnt lgkmcnt(0)"); e("s_barrier")
e("s_cmp_lg_u32 s44, 0"); e("s_cbranch_scc1 G_SORTED")
e("ds_read_b32 v6, v5 offset:%d" % CNT)
e("s_waitcnt lgkmcnt(0)")
e("v_min_u32 v6, 63, v6"); e("v_lshlrev_b32 v6, 2, v6")
e("ds_add_rtn_u32 v7, v6, v15 offset:%d" % BIN)
e("v_lshlrev_b32 v8, 2, v4")
e("s_waitcnt lgkmcnt(0)"); e("s_barrier")
e("ds_read_b32 v9, v8 offset:%d" % BIN)
e("s_waitcnt lgkmcnt(0)")
e("v_mov_b32 v10, v9")
scan(10)
e("v_sub_u32 v10, v10, v9")
e("ds_bpermute_b32 v10, v6, v10")
MAP = str(P.get("MAP", "m6498325701"))[1:][::-1]
assert sorted(MAP) == list("0123456789")
e("s_mov_b32 s60, 0x%s" % MAP[2:]); e("s_movk_i32 s61, 0x%s" % MAP[:2]); e("s_lshl_b32 s48, s3, 2"); e("s_lshr_b64 s[60:61], s[60:61], s48")
e("s_and_b32 s60, s60, 15")
if P["PRI"]:
    th = {1: (4, 7, 9), 2: (7, 8, 9), 3: (4, 8, 99), 4: (2, 5, 8), 5: (8, 99, 99)}[P["PRI"]]
    for n, t in enumerate(th):
        e("s_cmp_lt_u32 s%d, %d" % (60 if P["PRI"] < 3 else 3, t)); e("s_cbranch_scc1 G_PR"); e("s_setprio %d" % (n + 1))
    e("G_PR:")
e("s_lshl_b32 s60, s60, 8")
e("s_waitcnt lgkmcnt(0)")
e("v_add_lshl_u32 v10, v10, v7, 2")
e("ds_write_b32 v10, v5 offset:%d" % PERM)
e("v_add_u32 v8, s60, v8")
e("s_waitcnt lgkmcnt(0)"); e("s_barrier")
e("ds_read_b32 v%d, v8 offset:%d" % (EV, PERM))
e("s_waitcnt lgkmcnt(0)")
e("v_lshlrev_b32 v%d, 3, v%d" % (OA, EV)); e("v_add_u32 v%d, 16, v%d" % (OA + 1, OA)); e("s_nop 1")
e("v_permlane32_swap_b32 v%d, v%d" % (OA, OA + 1))
for h in range(2): e("buffer_load_dwordx4 v[%d:%d], v%d, s[16:19], s39 offen" % (MM + 4 * h, MM + 4 * h + 3, OA + h))
e("G_SORTED:")
e("v_lshlrev_b32 v5, 2, v%d" % EV); e("v_mov_b32 v6, %d" % MORE)
e("ds_read_b128 v[%d:%d], v5" % (HD, HD + 3)); e("ds_read_b32 v6, v6"); e("ds_read_b32 v7, v%d offset:%d" % (EV, CNT))
e("s_waitcnt lgkmcnt(0)")
e("v_readlane_b32 s47, v7, 63")
e("s_mov_b32 s57, %d" % (NQ - 1)); e("s_mov_b32 s48, 0")
if P["BAR"] == 2:
    for n, t in enumerate(str(P.get("TH", "t48c"))[1:]): e("s_mul_i32 s%d, s47, %d" % (49 + n, int(t, 16)))
    e("s_setprio 3")
e("v_readfirstlane_b32 s56, v6"); stamp(4)
for i in range(4): e("v_lshlrev_b32 v%d, 3, v%d" % (HD + i, HD + i))
SYNC = P["SYNC"]
if not SYNC:
    for k in range(NQ - 2, -1, -1):
        e("v_cmp_eq_u32 vcc, 0, v%d" % (HD + k)); e("s_nop 1")
        for j in range(k, NQ - 1): e("v_cndmask_b32 v%d, v%d, v%d, vcc" % (HD + j, HD + j, HD + j + 1))
        e("v_cndmask_b32 v%d, v%d, 0, vcc" % (HD + NQ - 1, HD + NQ - 1))
else:
    e("s_mov_b32 s57, %d" % (NQ - 1))
e("ds_read_b64 v[%d:%d], v%d offset:%d" % (REC, REC + 1, HD, RB))
QP = ["quad_perm:[0,0,2,2] row_mask:0xf bank_mask:0xf", "quad_perm:[1,1,3,3] row_mask:0xf bank_mask:0xf"]
def perms(k):
    for j in range(8):
        r = ROW + 8 * k + j
        e("v_perm_b32 v%d, v%d, v%d, s30" % (UN + 2 * j, r + 8, r)); e("v_perm_b32 v%d, v%d, v%d, s31" % (UN + 2 * j + 1, r + 8, r))
def dots(k, h):
    if P["FM"] == 2: return
    for l in range(2):
        for f in range(8): e("v_dot2c_f32_bf16_dpp v%d, v%d, v%d %s" % (ACC + 16 * l + 8 * h + f, CW + k + l, UN + 8 * h + f, QP[h]))
def cperm(k):
    for l in range(2): e("v_perm_b32 v%d, v%d, v%d, s%d" % (CW + k + l, REC + 2 * k + 3, REC + 2 * k + 1, 30 + l))
def chase(k):
    r = REC + 2 * k; n = REC + 2 * ((k + 1) % D)
    e("s_waitcnt lgkmcnt(0)")
    e("v_lshrrev_b32 v5, 9, v%d" % r); e("v_and_b32 v5, %s, v5" % (P["HACK"] * 32 if P.get("HACK") else "-32"))
    e("v_lshlrev_b32 v%d, 3, v%d" % (HD, r)); e("v_and_b32 v%d, s54, v%d" % (HD, HD))
    e("v_add_u32_dpp v6, v5, v14 " + QP[0]); e("v_add_u32_dpp v7, v5, v14 " + QP[1])
    e("v_cmp_eq_u32 vcc, 0, v%d" % HD)
    e("buffer_load_dwordx4 v[%d:%d], v6, s[16:19], 0 offen" % (ROW + 8 * k, ROW + 8 * k + 3))
    e("buffer_load_dwordx4 v[%d:%d], v7, s[16:19], 0 offen" % (ROW + 8 * k + 4, ROW + 8 * k + 7))
    for j in range(NQ - 1): e("v_cndmask_b32 v%d, v%d, v%d, vcc" % (HD + j, HD + j, HD + j + 1))
    e("v_cndmask_b32 v%d, v%d, 0, vcc" % (HD + NQ - 1, HD + NQ - 1))
    e("ds_read_b64 v[%d:%d], v%d offset:%d" % (n, n + 1, HD, RB))
def check(k, tag):
    e("v_cmp_ne_u32 vcc, 0, v%d" % HD)
    cperm(k)
    e("s_add_u32 s48, s48, 32")
    e("s_cbranch_vccz G_DR%s" % tag)
    e("s_cmp_lt_u32 s48, s49"); e("s_cbranch_scc1 G_NB%s" % tag)
    e("s_mov_b32 s49, s50"); e("s_mov_b32 s50, s51"); e("s_mov_b32 s51, -1")
    if P.get("RP"): prefetch()
    e("s_setprio 2"); e("s_cmp_lg_u32 s50, -1"); e("s_cbranch_scc1 G_NB%s" % tag)
    e("s_setprio 1"); e("s_cmp_lg_u32 s49, -1"); e("s_cbranch_scc1 G_NB%s" % tag)
    e("s_setprio 0")
    e("G_NB%s:" % tag)
assert D % 2 == 0 and D >= 4 and P["BAR"] == 2 and not SYNC
e("s_movk_i32 s62, 0x2000"); e("s_mov_b32 s30, 0x05040100"); e("s_mov_b32 s31, 0x07060302")
for k in range(0, D, 2): chase(k); chase(k + 1); check(k, "P%d" % k)
if P.get("RP") == 1: prefetch()
e("G_LOOP:")
for k in range(0, D, 2):
    e("s_waitcnt vmcnt(%d)" % (2 * (D - 2)))
    perms(k); chase(k); dots(k, 0); chase(k + 1); dots(k, 1); check(k, "L%d" % k)
e("s_sub_u32 s62, s62, 1"); e("s_cbranch_scc0 G_LOOP"); e("s_branch G_DRL%d" % (D - 2))
def drain(ks):
    for n, k in enumerate(ks):
        e("s_waitcnt vmcnt(%d)" % (4 * (len(ks) - 1 - n))); perms(k); dots(k, 0); dots(k, 1)
    e("s_branch G_DONE")
for k in range(0, D - 2, 2):
    e("G_DRP%d:" % k); drain(list(range(0, k + 1, 2)))
e("G_DRP%d:" % (D - 2))
for k in range(D - 2, -1, -2):
    e("G_DRL%d:" % k); drain([(k + 2 + j) % D for j in range(0, D, 2)])
e("G_DONE:"); e("s_nop 2"); e("s_waitcnt lgkmcnt(0)")
if P["BAR"] == 1:
    e("s_cmp_eq_u32 s57, 0"); e("s_cbranch_scc1 G_DN2"); e("s_sub_u32 s57, s57, 1"); e("s_barrier"); e("s_branch G_DONE"); e("G_DN2:")
e("s_cmp_le_u32 s56, s44"); e("s_cbranch_scc1 G_EPI")
e("s_add_u32 s44, s44, 1"); e("s_waitcnt lgkmcnt(0)"); e("s_barrier")
e("s_branch G_ROUND")
e("G_EPI:"); stamp(5)
RBF = 48; HI = 56; DD = 72; G = 88; U = ACC + 16
e("v_lshlrev_b32 v5, 2, v%d" % EV)
e("ds_read_b128 v[%d:%d], v5 offset:%d" % (RBF, RBF + 3, RBL))
for j in range(16): e("v_cvt_pk_bf16_f32 v%d, v%d, v%d" % (HI + j, ACC + 2 * j, ACC + 2 * j + 1))
SW = "quad_perm:[1,0,3,2] row_mask:0xf bank_mask:0xf"
e("s_mov_b32 vcc_lo, 0x55555555"); e("s_mov_b32 vcc_hi, 0x55555555")
for j in range(4): e("v_mov_b32 v%d, 0" % (RBF + 4 + j))
for n, b in enumerate((HI, HI + 8)):
    for j in range(4): e("v_cndmask_b32_dpp v%d, v%d, v%d, vcc %s" % (ACC + 8 * n + j, b + 4 + j, b + j, SW))
e("s_not_b64 vcc, vcc")
for n, b in enumerate((HI, HI + 8)):
    for j in range(4): e("v_cndmask_b32_dpp v%d, v%d, v%d, vcc %s" % (ACC + 8 * n + 4 + j, b + j, b + 4 + j, SW))
HI = ACC
e("s_waitcnt lgkmcnt(0)")
for j in range(4): e("v_permlane32_swap_b32 v%d, v%d" % (RBF + j, RBF + 4 + j))
for b in (HI, HI + 8):
    for j in range(4): e("v_permlane32_swap_b32 v%d, v%d" % (b + j, b + 4 + j))
def mf(d, a, b, c):
    e("v_mfma_f32_32x32x16_bf16 v[%d:%d], v[%d:%d], v[%d:%d], %s" % (d, d + 15, a, a + 3, b, b + 3, c if c == "0" else "v[%d:%d]" % (c, c + 15)))
for h in range(2):
    e("s_nop 1")
    mf(DD, W, HI + 4 * h, "0"); mf(G, W + 8, RBF + 4 * h, "0")
    mf(DD, W + 4, HI + 8 + 4 * h, DD)
    mf(U, W + 16, RBF + 4 * h, "0")
    e("s_nop 11")
    for j in range(4):
        e("v_pk_mul_f32 v[%d:%d], v[%d:%d], v[%d:%d]" % (G + 2 * j, G + 2 * j + 1, G + 2 * j, G + 2 * j + 1, DD + 2 * j, DD + 2 * j + 1))
    for j in range(4):
        e("v_pk_fma_f32 v[%d:%d], v[%d:%d], v[%d:%d], v[%d:%d]" % (G + 2 * j, G + 2 * j + 1, G + 8 + 2 * j, G + 9 + 2 * j, DD + 8 + 2 * j, DD + 9 + 2 * j, G + 2 * j, G + 2 * j + 1))
    for j in range(4): e("v_cvt_pk_bf16_f32 v%d, v%d, v%d" % (DD + j, G + 2 * j, G + 2 * j + 1))
    e("s_nop 1")
    mf(U, W + 12, DD, U)
    for j in range(4):
        m = MM + 4 * h + j
        e("v_lshlrev_b32 v%d, 16, v%d" % (G + 2 * j, m)); e("v_and_b32 v%d, s52, v%d" % (G + 2 * j + 1, m))
    e("s_nop 7")
    for j in range(4):
        e("v_pk_fma_f32 v[%d:%d], v[%d:%d], v[%d:%d], v[%d:%d]" % (G + 2 * j, G + 2 * j + 1, U + 2 * j, U + 2 * j + 1, U + 8 + 2 * j, U + 9 + 2 * j, G + 2 * j, G + 2 * j + 1))
    for j in range(4): e("v_cvt_pk_bf16_f32 v%d, v%d, v%d" % (MM + 4 * h + j, G + 2 * j, G + 2 * j + 1))
    e("buffer_store_dwordx4 v[%d:%d], v%d, s[32:35], s39 offen %s" % (MM + 4 * h, MM + 4 * h + 3, OA + h, P.get("OS", "")))
stamp(6); stamp_out(1, 24, 3, 5)
e("G_EXIT:"); e("s_endpgm")
e('.section .rodata,"a"')
for n, nv in (("part_kernel", 128), ("gath_kernel", NV2)):
    nv = (nv + 3) // 4 * 4
    e(".p2align 6"); e(".amdhsa_kernel %s" % n)
    e("  .amdhsa_next_free_vgpr %d" % nv); e("  .amdhsa_next_free_sgpr 80"); e("  .amdhsa_accum_offset %d" % nv)
    e("  .amdhsa_group_segment_fixed_size 0"); e("  .amdhsa_kernarg_size 112"); e("  .amdhsa_user_sgpr_count 2")
    e("  .amdhsa_user_sgpr_kernarg_segment_ptr 1"); e("  .amdhsa_system_sgpr_workgroup_id_x 1"); e(".end_amdhsa_kernel")
open(sys.argv[1], "w").write("\n".join(out) + "\n")
```

```python
import sys, struct
P = dict(D=4, ORD=1, SYNC=0, NQ=4, PF=1, ST="nt", LD="nt", PFN=1, XM=1, FM=0, RL="nt", BAR=2, PRI=0)
for a in sys.argv[2:]:
    k, v = a.split("=")
    P[k] = int(v) if v.lstrip("-").isdigit() else v
out = []
def e(s=""): out.append(s)
NAME = "gather_scatter__molecular_angular_gemnet__graph"
E, T = 160000, 2560000
NCH, CH = 256, 10000
NB, BE = 256, 625
CSTR = 62464
WS_DESC = NCH * CSTR
WS_W = WS_DESC + NCH * 1024
WS_SZ = WS_W + 5 * 1024
MDIV = (2**32 + BE - 1) // BE
assert MDIV < 2**24 and all((o * MDIV) >> 32 == o // BE for o in range(E))
NQ = P["NQ"]
MQ = (2**32 * NQ) // E
assert (E - 1) * MQ >> 32 == NQ - 1 and MQ < 2**24
TRASH = 2560
hdr = open("cdna_kernels/%s.s.ref" % NAME).read().split("; Override")[0]
e(hdr.rstrip())
L1 = max(2064 + CSTR, P.get("L1", 83968))
CAPW = 1280
SCR = 10272
CNT = SCR + 2576; BIN = CNT + 2576; PERM = BIN + 256
RBL = PERM + 2560
RB = RBL + 10240
L2 = RB + 16 + 10 * CAPW * 8
e("; @launch kernel=part_kernel grid=(256,1,1) block=(512,1,1) lds=%d" % L1)
e("; @launch kernel=gath_kernel grid=(256,1,1) block=(640,1,1) lds=%d" % L2)
e('.amdgcn_target "amdgcn-amd-amdhsa--gfx950"')
e(".text")
def srd(d, b, size, stride=0):
    e("s_mov_b32 s%d, s%d" % (d, b))
    if stride: e("s_or_b32 s%d, s%d, 0x%x" % (d + 1, b + 1, stride << 16))
    else: e("s_mov_b32 s%d, s%d" % (d + 1, b + 1))
    e("s_mov_b32 s%d, %d" % (d + 2, size))
    e("s_mov_b32 s%d, 0x00020000" % (d + 3))
def scan(v):
    for sh in (1, 2, 4, 8):
        e("s_nop 1")
        e("v_add_u32_dpp v%d, v%d, v%d row_shr:%d row_mask:0xf bank_mask:0xf bound_ctrl:0" % (v, v, v, sh))
    e("s_nop 1")
    e("v_add_u32_dpp v%d, v%d, v%d row_bcast:15 row_mask:0xa bank_mask:0xf" % (v, v, v))
    e("s_nop 1")
    e("v_add_u32_dpp v%d, v%d, v%d row_bcast:31 row_mask:0xc bank_mask:0xf" % (v, v, v))
WS_ST = 64 << 20
def stamp(i):
    if P.get("STAMP"):
        e("s_waitcnt lgkmcnt(0)"); e("s_memrealtime s[%d:%d]" % (64 + 2 * i, 65 + 2 * i)); e("s_waitcnt lgkmcnt(0)")
def stamp_out(k, srd0, wreg, sh):
    if P.get("STAMP"):
        e("s_waitcnt vmcnt(0)"); stamp(7)
        for i in range(8): e("v_mov_b32 v%d, s%d" % (8 + i, 64 + 2 * i))
        e("s_lshl_b32 s63, s2, 9"); e("s_lshl_b32 s62, s%d, %d" % (wreg, sh)) if sh >= 0 else e("s_lshr_b32 s62, s%d, %d" % (wreg, -sh))
        e("s_add_u32 s63, s63, s62"); e("s_add_u32 s63, s63, %d" % (WS_ST + k * (1 << 20)))
        e("s_mov_b32 s%d, 0x8000000" % (srd0 + 2)); e("v_mov_b32 v7, 0"); e("s_mov_b64 exec, 1")
        e("buffer_store_dwordx4 v[8:11], v7, s[%d:%d], s63 offen" % (srd0, srd0 + 3))
        e("buffer_store_dwordx4 v[12:15], v7, s[%d:%d], s63 offen offset:16" % (srd0, srd0 + 3))
def kstart(n):
    e(".globl %s" % n); e(".p2align 8"); e(".type %s,@function" % n); e("%s:" % n)

HIST, BASE, STG = 0, 1024, 2064
BCAP, BSTR = 84, 528
kstart("part_kernel")
e("s_cmp_ge_u32 s2, %d" % NCH); e("s_cbranch_scc1 P_EXIT")
stamp(0)
e("s_load_dwordx4 s[4:7], s[0:1], 8")
e("s_load_dwordx2 s[8:9], s[0:1], 32")
e("s_load_dwordx2 s[10:11], s[0:1], 104")
e("s_load_dwordx8 s[40:47], s[0:1], 56")
e("v_lshlrev_b32 v1, 4, v0"); e("v_lshlrev_b32 v2, 3, v0"); e("v_lshlrev_b32 v3, 2, v0")
e("v_mov_b32 v4, 0"); e("v_mov_b32 v5, 1")
e("v_readfirstlane_b32 s35, v0")
e("ds_write_b32 v3, v4")
e("v_cmp_gt_u32 vcc, %d, v0" % (CH // 4 - 2048))
e("s_mul_i32 s28, s2, %d" % (CH * 4)); e("s_mul_i32 s29, s2, %d" % (CH * 2))
e("s_mov_b64 s[36:37], vcc")
e("s_waitcnt lgkmcnt(0)")
srd(12, 4, T * 4); srd(16, 6, T * 4); srd(20, 8, T * 2); srd(24, 10, WS_SZ)
PT = 128
e("v_mov_b32 v%d, 0" % (PT + 8))
e("s_cmp_lg_u32 s35, 448"); e("s_cbranch_scc1 P_NOPREP"); e("s_cmp_ge_u32 s2, 5"); e("s_cbranch_scc1 P_NOPREP")
e("v_and_b32 v8, 3, v0"); e("v_bfe_u32 v9, v0, 2, 1"); e("v_lshl_add_u32 v8, v9, 3, v8")
e("v_bfe_u32 v9, v0, 3, 1"); e("v_lshl_add_u32 v8, v9, 2, v8"); e("v_lshlrev_b32 v8, 1, v8")
e("v_bfe_u32 v9, v0, 4, 1"); e("v_bfe_u32 v13, v0, 5, 1")
e("v_xor_b32 v14, 1, v9")
e("v_lshl_add_u32 v15, v13, 8, v8")
e("v_lshl_add_u32 v10, v9, 20, v15")
e("v_lshl_add_u32 v11, v14, 20, v15")
e("v_lshl_add_u32 v12, v9, 5, v8"); e("v_lshl_add_u32 v12, v13, 20, v12")
imgs = [(10, 44, 512, 32), (11, 44, 512, 32), (12, 42, 512, 64), (10, 46, 512, 32), (11, 40, 256, 32)]
for n, (va, sp, sz, st) in enumerate(imgs):
    if n < 4: e("s_cmp_lg_u32 s2, %d" % n); e("s_cbranch_scc1 P_IM%d" % (n + 1))
    srd(48, sp, sz)
    for j in range(8): e("buffer_load_ushort v%d, v%d, s[48:51], 0 offen offset:%d" % (PT + j, va, j * st))
    if n < 4: e("s_branch P_NOPREP"); e("P_IM%d:" % (n + 1))
e("P_NOPREP:")
VO, VI, VA, VR = 8, 28, 48, 60
VB = 80
LD = P["LD"].replace("+"," "); P["ST"] = P["ST"].replace("+"," ")
def tail(g, on):
    if g == 4: e("s_mov_b64 exec, %s" % ("s[36:37]" if on else "-1"))
def ldo(g):
    tail(g, 1); e("s_add_u32 s30, s28, %d" % (g * 8192))
    e("buffer_load_dwordx4 v[%d:%d], v1, s[16:19], s30 offen %s" % (VO + 4 * g, VO + 4 * g + 3, LD)); tail(g, 0)
def ldai(g):
    tail(g, 1); e("s_add_u32 s30, s29, %d" % (g * 4096))
    e("buffer_load_dwordx2 v[%d:%d], v2, s[20:23], s30 offen %s" % (VA + 2 * g, VA + 2 * g + 1, LD))
    e("s_add_u32 s30, s28, %d" % (g * 8192))
    e("buffer_load_dwordx4 v[%d:%d], v1, s[12:15], s30 offen %s" % (VI + 4 * g, VI + 4 * g + 3, LD)); tail(g, 0)
seq = {0: "o0 o1 a0 o2 a1 o3 a2 o4 a3 a4", 1: "o0 o1 o2 a0 o3 a1 o4 a2 a3 a4", 2: "o0 o1 o2 o3 o4 a0 a1 a2 a3 a4"}[P.get("SEQ", 2)].split()
LA = P.get("LA", 5)
pos = {}; nld = 0
def issue(upto):
    global nld
    for x in seq[:upto]:
        if x not in pos: (ldo if x[0] == "o" else ldai)(int(x[1])); nld += 1 if x[0] == "o" else 2; pos[x] = nld
issue(LA)
e("s_mov_b32 s31, %d" % MDIV); e("s_mov_b32 s32, %d" % MQ); e("s_mov_b32 s33, %d" % -BE); e("s_movk_i32 s34, %d" % (BSTR // 4))
e("s_movk_i32 s39, %d" % BCAP)
e("s_barrier")
def put(i, j, a):
    t = 120 + 2 * j
    e("v_and_b32 v7, 2, v6"); e("v_add_u32 v%d, v7, v6" % t); e("v_mad_i32_i24 v%d, v7, -2, v6" % (t + 1))
    e("ds_write_b32 v%d, v%d offset:%d" % (t, VI + i, STG))
    e("ds_write_b16%s v%d, v%d offset:%d" % (("", "_d16_hi")[j % 2], t + 1, a, STG + 4))
for g in range(5):
    e("s_waitcnt vmcnt(%d)" % (nld - pos["o%d" % g])); issue(LA + g + 1); tail(g, 1)
    for j in range(4):
        i = 4 * g + j
        e("v_mul_hi_u32_u24 v%d, s31, v%d" % (VB + i, VO + i))
        e("v_lshlrev_b32 v%d, 2, v%d" % (VB + i, VB + i))
        e("ds_add_rtn_u32 v%d, v%d, v5" % (VR + i, VB + i))
    tail(g, 0)
assert nld == 15
e("v_and_b32 v6, 63, v0"); e("v_lshlrev_b32 v6, 4, v6")
e("s_waitcnt lgkmcnt(0)"); e("s_barrier")
stamp(1)
e("ds_read_b128 v[100:103], v6")
e("s_waitcnt lgkmcnt(0)")
for j in range(4):
    e("v_add_u32 v%d, 1, v%d" % (104 + j, 100 + j)); e("v_lshrrev_b32 v%d, 1, v%d" % (104 + j, 104 + j))
e("v_add_u32 v109, v104, v105"); e("v_add_u32 v110, v109, v106"); e("v_add_u32 v7, v110, v107")
e("v_mov_b32 v111, v7")
scan(7)
e("v_sub_u32 v108, v7, v111")
e("v_add_u32 v111, v108, v110"); e("v_add_u32 v110, v108, v109"); e("v_add_u32 v109, v108, v104")
for j in range(4): e("v_mul_u32_u24 v%d, 12, v%d" % (112 + j, 108 + j))
e("ds_write_b128 v6, v[112:115] offset:%d" % BASE)
e("s_cmp_lg_u32 s35, 0"); e("s_cbranch_scc1 P_NOTW0")
for j in range(4): e("v_lshrrev_b32 v7, 2, v%d" % (112 + j)); e("v_lshl_or_b32 v%d, v%d, 16, v7" % (PT + j, 104 + j))
e("s_lshl_b32 s30, s2, 10"); e("s_add_u32 s30, s30, %d" % WS_DESC)
e("buffer_store_dwordx4 v[%d:%d], v6, s[24:27], s30 offen" % (PT, PT + 3))
e("v_mov_b32 v120, %d" % TRASH); e("v_mov_b32 v121, -14")
for j in range(4):
    e("v_and_b32 v122, 1, v%d" % (100 + j)); e("v_cmp_eq_u32 vcc, 1, v122")
    e("v_mad_u32_u24 v122, v%d, 6, v%d" % (100 + j, 112 + j)); e("s_nop 0")
    e("v_cndmask_b32 v122, v121, v122, vcc"); e("v_add_u32 v122, %d, v122" % (STG + 2))
    e("ds_write_b32 v122, v120")
e("P_NOTW0:")
stamp(2)
for g in range(5):
    tail(g, 1)
    for j in range(4): e("ds_read_b32 v%d, v%d offset:%d" % (100 + 4 * g + j, VB + 4 * g + j, BASE))
    tail(g, 0)
for g in range(5):
    e("s_waitcnt vmcnt(%d)" % (nld - pos["a%d" % g])); tail(g, 1)
    for j in range(4):
        i = 4 * g + j
        e("v_mul_hi_u32_u24 v6, s32, v%d" % (VI + i))
        e("v_lshl_add_u32 v6, v%d, 2, v6" % (VO + i))
        e("v_mad_i32_i24 v6, v%d, s33, v6" % (VB + i))
        e("v_lshl_add_u32 v%d, v%d, 14, v6" % (VI + i, VI + i))
        if g == 0 and j == 0: e("s_waitcnt lgkmcnt(0)")
        e("v_mad_u32_u24 v6, v%d, 6, v%d" % (VR + i, 100 + i)); put(i, j, VA + 2 * g + j // 2)
    tail(g, 0)
e("s_mul_i32 s28, s2, %d" % CSTR)
e("s_waitcnt lgkmcnt(0)"); e("s_barrier")
stamp(3)
for g in range(7):
    e("ds_read_b128 v[%d:%d], v1 offset:%d" % (8 + 4 * g, 11 + 4 * g, STG + g * 8192))
for g in range(7):
    e("s_add_u32 s30, s28, %d" % (g * 8192))
    e("s_waitcnt lgkmcnt(%d)" % (6 - g))
    e("buffer_store_dwordx4 v[%d:%d], v1, s[24:27], s30 offen %s" % (8 + 4 * g, 11 + 4 * g, P["ST"]))
stamp(4)
e("s_cmp_ge_u32 s35, %d" % ((CSTR - 7 * 8192) // 16)); e("s_cbranch_scc1 P_PR2")
e("ds_read_b128 v[48:51], v1 offset:%d" % (STG + 7 * 8192))
e("s_add_u32 s30, s28, %d" % (7 * 8192))
e("s_waitcnt lgkmcnt(0)")
e("buffer_store_dwordx4 v[48:51], v1, s[24:27], s30 offen %s" % P["ST"])
e("P_PR2:")
e("s_cmp_lg_u32 s35, 448"); e("s_cbranch_scc1 P_FIN"); e("s_cmp_ge_u32 s2, 5"); e("s_cbranch_scc1 P_FIN")
for j in range(4): e("v_lshl_or_b32 v%d, v%d, 16, v%d" % (PT + 8 + j, PT + 1 + 2 * j, PT + 2 * j))
e("s_lshl_b32 s30, s2, 10"); e("s_add_u32 s30, s30, %d" % (WS_W - 448 * 16))
e("buffer_store_dwordx4 v[%d:%d], v1, s[24:27], s30 offen" % (PT + 8, PT + 11))
e("P_FIN:"); stamp_out(0, 24, 35, -1)
e("P_EXIT:"); e("s_endpgm")

D = P["D"]
ACC = 16; ROW = 48; CW = ROW + 8 * D; REC = CW + D; HD = REC + 2 * D
UN = HD + 4
LNK = 48
PFV = max(UN + 16, 118); EV = PFV + 1; W = EV + 1; MM = W + 20; OA = MM + 8; NV2 = OA + 2
MORE = 10256
kstart("gath_kernel")
e("s_cmp_ge_u32 s2, %d" % NB); e("s_cbranch_scc1 G_EXIT")
stamp(0)
e("s_lshr_b32 s63, s2, 3")
if P["XM"]:
    e("s_and_b32 s4, s2, 7"); e("s_lshl_b32 s4, s4, 5"); e("s_add_u32 s2, s4, s63")
e("s_mul_i32 s63, s63, %d" % (((E * 32 // 128 // P.get("PFQ", NQ) + 31) // 32) * 128))
e("s_load_dwordx2 s[4:5], s[0:1], 0")
e("s_load_dwordx2 s[6:7], s[0:1], 24")
e("s_load_dwordx2 s[8:9], s[0:1], 88")
e("s_load_dwordx2 s[10:11], s[0:1], 104")
e("s_load_dwordx2 s[36:37], s[0:1], 40")
e("v_lshrrev_b32 v2, 6, v0"); e("v_and_b32 v4, 63, v0")
e("v_readfirstlane_b32 s3, v2")
e("v_lshlrev_b32 v1, 4, v4")
e("v_min_u32 v3, 6, v2"); e("v_mad_u32_u24 v2, v2, 25, v3"); e("v_add_u32 v2, v2, v4")
e("v_lshlrev_b32 v5, 10, v2"); e("v_mov_b32 v3, 0"); e("v_mov_b32 v15, 1")
e("s_lshl_b32 s30, s2, 2"); e("s_add_u32 s30, s30, %d" % WS_DESC)
e("s_waitcnt lgkmcnt(0)")
srd(24, 10, WS_SZ)
e("s_cmp_lt_u32 s3, 6"); e("s_mov_b32 s38, 0x1ffffff"); e("s_cselect_b32 exec_lo, 0x3ffffff, s38"); e("s_mov_b32 exec_hi, 0")
e("buffer_load_dword v3, v5, s[24:27], s30 offen")
e("s_mov_b64 exec, -1")
e("s_load_dwordx4 s[40:43], s[36:37], 0")
srd(16, 4, E * 32); srd(20, 6, E * 2); srd(32, 8, E * 32)
PFQ = P.get("PFQ", NQ)
PFL = (E * 32 // 128 // PFQ + 31) // 32
def prefetch():
    e("buffer_load_dword v12, v%d, s[16:19], 0 offen" % PFV)
    e("v_add_u32 v%d, %d, v%d" % (PFV, PFL * 32 * 128, PFV))
e("v_cmp_gt_u32 vcc, %d, v0" % PFL)
e("v_lshl_add_u32 v7, v0, 7, s63"); e("v_bfrev_b32 v%d, 1" % PFV); e("v_cndmask_b32 v%d, v%d, v7, vcc" % (PFV, PFV))
PF0 = P.get("PF0", 0)
if P.get("B0", 1): e("s_barrier")
for _ in range(PF0): prefetch()
e("s_mul_i32 s31, s2, %d" % (BE * 2)); e("v_min_u32 v5, %d, v0" % (BE - 1)); e("v_lshlrev_b32 v5, 1, v5")
e("buffer_load_ushort v%d, v5, s[20:23], s31 offen" % OA)
e("s_mov_b32 s31, %d" % WS_W)
for n in range(5):
    e("buffer_load_dwordx4 v[%d:%d], v1, s[24:27], s31 offen offset:%d" % (W + 4 * n, W + 4 * n + 3, 1024 * n if n < 4 else 0))
    if n == 3: e("s_add_u32 s31, s31, 4096")
e("v_mul_u32_u24 v2, %d, v2" % CSTR)
for i in range(32): e("v_mov_b32 v%d, 0" % (ACC + i))
e("v_mov_b32 v5, 0xffffc000"); e("v_mov_b32 v6, %d" % RB)
e("ds_write2_b32 v6, v5, v16 offset0:0 offset1:1")
e("v_mov_b32 v6, %d" % MORE); e("ds_write_b32 v6, v16")
e("s_mov_b32 s44, 0")
e("v_mov_b32 v%d, 0" % EV); e("v_mov_b32 v%d, 0" % (OA + 1)); e("s_mul_i32 s39, s2, %d" % (BE * 32))
e("s_mov_b32 s52, 0xffff0000"); e("s_movk_i32 s53, 0x3fff"); e("s_mov_b32 s54, 0x1fff8")
e("s_mul_i32 s55, s3, %d" % (CAPW * 8)); e("s_add_u32 s55, s55, %d" % (RB + 16))
e("s_lshl_b32 s45, s3, 8"); e("s_add_u32 s45, s45, %d" % SCR)
e("v_lshl_add_u32 v13, v4, 2, s45")
e("v_and_b32 v14, 1, v4"); e("v_lshlrev_b32 v14, 4, v14")
e("s_waitcnt vmcnt(%d)" % (6 + PF0))
e("v_and_b32 v5, 0xffff, v3"); e("v_lshl_add_u32 v2, v5, 2, v2"); e("v_lshrrev_b32 v3, 16, v3")
stamp(1)
e("G_ROUND:")
e("v_lshlrev_b32 v5, 4, v0")
for i in range(4): e("v_mov_b32 v%d, 0" % (8 + i))
e("ds_write_b32 v13, v8")
e("ds_write_b128 v5, v[8:11]")
e("v_lshlrev_b32 v5, 2, v0"); e("ds_write_b32 v5, v8 offset:%d" % CNT); e("ds_write_b32 v5, v8 offset:%d" % (BIN - 16))
e("v_mov_b32 v7, v3")
for sh in (1, 2, 4, 8):
    e("s_nop 1"); e("v_add_u32_dpp v7, v7, v7 row_shr:%d row_mask:0xf bank_mask:0xf bound_ctrl:0" % sh)
e("s_nop 1"); e("v_add_u32_dpp v7, v7, v7 row_bcast:15 row_mask:0xa bank_mask:0xf")
e("v_sub_u32 v6, v7, v3")
e("v_min_u32 v7, %d, v7" % (CAPW // 2)); e("v_min_u32 v6, %d, v6" % (CAPW // 2))
e("v_sub_u32 v8, v7, v6")
e("v_readlane_b32 s49, v7, 31")
e("v_cmp_lt_u32 vcc, 0, v8")
e("v_mul_u32_u24 v9, 12, v6"); e("v_sub_u32 v9, v2, v9")
e("v_mbcnt_lo_u32_b32 v10, vcc_lo, 0"); e("v_lshl_add_u32 v10, v10, 2, s45")
e("v_subrev_u32 v6, 1, v6")
e("v_lshlrev_b32 v11, v6, v15")
e("v_ashrrev_i32 v6, 5, v6"); e("v_lshl_add_u32 v6, v6, 2, s45")
e("s_mov_b64 exec, vcc")
e("ds_write_b32 v10, v9 offset:128")
e("ds_or_b32 v6, v11 offset:4")
e("s_mov_b64 exec, -1")
e("ds_read_b32 v6, v13 offset:4")
e("v_mad_u32_u24 v2, v8, 12, v2"); e("v_sub_u32 v3, v3, v8")
e("v_cmp_lt_u32 vcc, 0, v3")
e("s_add_u32 s50, s49, 63"); e("s_lshr_b32 s50, s50, 6")
e("s_mov_b32 s46, vcc_lo")
e("s_sub_u32 s51, 0, s49"); e("s_and_b32 s51, s51, 63"); e("s_lshr_b64 s[58:59], -1, s51")
e("s_lshr_b32 s47, s45, 2"); e("s_add_u32 s47, s47, 32")
e("s_waitcnt lgkmcnt(0)")
AD = 88; XR = 98
for i in range(10):
    e("v_readlane_b32 s60, v6, %d" % (2 * i)); e("v_readlane_b32 s61, v6, %d" % (2 * i + 1))
    e("v_mov_b32 v7, s47"); e("s_nop 0")
    e("v_mbcnt_lo_u32_b32 v7, s60, v7"); e("v_mbcnt_hi_u32_b32 v7, s61, v7")
    e("s_bcnt1_i32_b64 s48, s[60:61]"); e("v_lshlrev_b32 v7, 2, v7"); e("s_add_u32 s47, s47, s48")
    e("ds_read_b32 v%d, v7" % (AD + i))
e("s_mov_b32 s48, 0")
for i in range(10):
    e("s_waitcnt lgkmcnt(%d)" % (9 - i))
    e("v_mad_u32_u24 v%d, v4, 12, v%d" % (AD + i, AD + i))
    if i == 5: e("s_add_u32 s48, s48, %d" % (5 * 768))
    e("s_cmp_gt_u32 s50, %d" % i); e("s_cselect_b64 exec, -1, 1")
    e("buffer_load_dwordx3 v[%d:%d], v%d, s[24:27], s48 offen offset:%d %s" % (LNK + 4 * i, LNK + 4 * i + 2, AD + i, (i % 5) * 768, P["RL"].replace("+", " ")))
e("s_mov_b64 exec, -1")
e("G_F3:")
NAFT = 0
e("s_cmp_lg_u32 s44, 0"); e("s_cbranch_scc1 G_NORBF")
e("s_waitcnt vmcnt(15)")
e("v_lshlrev_b32 v6, 16, v%d" % OA)
e("s_mov_b32 s30, 0xc1200000"); e("s_mov_b32 s31, 0x3fb8aa3b")
for j in range(4):
    e("s_lshl_b32 s60, s%d, 16" % (40 + j)); e("s_and_b32 s61, s%d, 0xffff0000" % (40 + j))
    e("v_subrev_f32 v8, s60, v6"); e("v_subrev_f32 v9, s61, v6")
    def rnd():
        e("v_cvt_pk_bf16_f32 v9, v8, v9"); e("v_lshlrev_b32 v8, 16, v9"); e("v_and_b32 v9, s52, v9")
    rnd(); e("v_mul_f32 v8, v8, v8"); e("v_mul_f32 v9, v9, v9")
    rnd(); e("v_mul_f32 v8, s30, v8"); e("v_mul_f32 v9, s30, v9")
    rnd(); e("v_mul_f32 v8, s31, v8"); e("v_mul_f32 v9, s31, v9")
    e("v_exp_f32 v8, v8"); e("v_exp_f32 v9, v9"); e("s_nop 0")
    e("v_cvt_pk_bf16_f32 v%d, v8, v9" % (MM + j))
e("v_lshlrev_b32 v5, 4, v0")
e("ds_write_b128 v5, v[%d:%d] offset:%d" % (MM, MM + 3, RBL))
e("G_NORBF:")
stamp(2)
e("s_waitcnt lgkmcnt(0)"); e("s_barrier")
e("s_cmp_eq_u32 s46, 0"); e("s_cbranch_scc1 G_NOMORE")
e("s_add_u32 s30, s44, 1"); e("v_mov_b32 v5, s30"); e("v_mov_b32 v6, %d" % MORE); e("ds_max_u32 v6, v5")
e("G_NOMORE:")
e("v_add_u32 v5, s55, v1")
e("v_subrev_u32 v6, %d, v5" % RB); e("v_lshrrev_b32 v6, 3, v6")
e("s_mov_b32 s30, 0x3e22f983"); e("s_mov_b32 s31, s30"); e("s_mov_b32 s60, -1.0"); e("s_mov_b32 s61, -1.0")
def lwrite(i):
    r = LNK + 4 * i
    e("v_bfi_b32 v%d, s53, v%d, v%d" % (r, XR + 2 * i, r)); e("v_bfi_b32 v%d, s53, v%d, v%d" % (r + 2, XR + 2 * i + 1, r + 2))
    e("ds_write_b128 v5, v[%d:%d] offset:%d" % (r, r + 3, 1024 * i))
for i in range(10):
    r = LNK + 4 * i
    e("s_cmp_le_u32 s50, %d" % i); e("s_cbranch_scc1 G_LE%d" % i)
    e("s_cmp_eq_u32 s50, %d" % (i + 1)); e("s_cselect_b64 exec, s[58:59], -1")
    e("s_waitcnt vmcnt(%d)" % (9 - i))
    e("v_and_b32 v8, s53, v%d" % r); e("v_and_b32 v9, s53, v%d" % (r + 2))
    e("v_and_b32 v10, -4, v8"); e("v_and_b32 v11, -4, v9")
    e("v_lshlrev_b32 v8, 2, v8"); e("v_lshlrev_b32 v9, 2, v9"); e("v_add_u32 v7, 1, v6")
    e("ds_wrxchg_rtn_b32 v%d, v8, v6" % (XR + 2 * i)); e("ds_wrxchg_rtn_b32 v%d, v9, v7" % (XR + 2 * i + 1))
    e("ds_add_u32 v10, v15 offset:%d" % CNT); e("ds_add_u32 v11, v15 offset:%d" % CNT)
    e("s_mov_b64 exec, -1")
    e("v_lshlrev_b32 v8, 16, v%d" % (r + 1)); e("v_and_b32 v9, s52, v%d" % (r + 1))
    e("v_pk_mul_f32 v[8:9], v[8:9], s[30:31]")
    e("v_cos_f32 v8, v8"); e("v_cos_f32 v9, v9")
    e("v_add_u32 v6, 128, v6")
    e("v_pk_add_f32 v[10:11], v[8:9], v[8:9]")
    e("v_pk_fma_f32 v[10:11], v[10:11], v[8:9], s[60:61]")
    e("v_cvt_pk_bf16_f32 v%d, v8, v10" % (r + 1)); e("v_cvt_pk_bf16_f32 v%d, v9, v11" % (r + 3))
    if i: e("s_waitcnt lgkmcnt(4)"); lwrite(i - 1)
for i in range(10, 0, -1):
    e("G_LE%d:" % i); e("s_waitcnt lgkmcnt(0)"); lwrite(i - 1)
    if i > 1: e("s_branch G_LE0")
e("G_LE0:")
for _ in range(P["PF"]): prefetch()
stamp(3)
e("v_lshlrev_b32 v5, 2, v0")
e("s_waitcnt lgkmcnt(0)"); e("s_barrier")
e("s_cmp_lg_u32 s44, 0"); e("s_cbranch_scc1 G_SORTED")
e("ds_read_b32 v6, v5 offset:%d" % CNT)
e("s_waitcnt lgkmcnt(0)")
e("v_min_u32 v6, 63, v6"); e("v_lshlrev_b32 v6, 2, v6")
e("ds_add_rtn_u32 v7, v6, v15 offset:%d" % BIN)
e("v_lshlrev_b32 v8, 2, v4")
e("s_waitcnt lgkmcnt(0)"); e("s_barrier")
e("ds_read_b32 v9, v8 offset:%d" % BIN)
e("s_waitcnt lgkmcnt(0)")
e("v_mov_b32 v10, v9")
scan(10)
e("v_sub_u32 v10, v10, v9")
e("ds_bpermute_b32 v10, v6, v10")
MAP = str(P.get("MAP", "m6498325701"))[1:][::-1]
assert sorted(MAP) == list("0123456789")
e("s_mov_b32 s60, 0x%s" % MAP[2:]); e("s_movk_i32 s61, 0x%s" % MAP[:2]); e("s_lshl_b32 s48, s3, 2"); e("s_lshr_b64 s[60:61], s[60:61], s48")
e("s_and_b32 s60, s60, 15")
if P["PRI"]:
    th = {1: (4, 7, 9), 2: (7, 8, 9), 3: (4, 8, 99), 4: (2, 5, 8), 5: (8, 99, 99)}[P["PRI"]]
    for n, t in enumerate(th):
        e("s_cmp_lt_u32 s%d, %d" % (60 if P["PRI"] < 3 else 3, t)); e("s_cbranch_scc1 G_PR"); e("s_setprio %d" % (n + 1))
    e("G_PR:")
e("s_lshl_b32 s60, s60, 8")
e("s_waitcnt lgkmcnt(0)")
e("v_add_lshl_u32 v10, v10, v7, 2")
e("ds_write_b32 v10, v5 offset:%d" % PERM)
e("v_add_u32 v8, s60, v8")
e("s_waitcnt lgkmcnt(0)"); e("s_barrier")
e("ds_read_b32 v%d, v8 offset:%d" % (EV, PERM))
e("s_waitcnt lgkmcnt(0)")
e("v_cmp_gt_u32 vcc, %d, v%d" % (BE * 4, EV)); e("v_lshlrev_b32 v%d, 3, v%d" % (OA, EV)); e("v_bfrev_b32 v8, 1")
e("v_cndmask_b32 v%d, v8, v%d, vcc" % (OA, OA)); e("v_add_u32 v%d, 16, v%d" % (OA + 1, OA)); e("s_nop 1")
e("v_permlane32_swap_b32 v%d, v%d" % (OA, OA + 1))
for h in range(2): e("buffer_load_dwordx4 v[%d:%d], v%d, s[16:19], s39 offen" % (MM + 4 * h, MM + 4 * h + 3, OA + h))
e("G_SORTED:")
e("v_lshlrev_b32 v5, 2, v%d" % EV); e("v_mov_b32 v6, %d" % MORE)
e("ds_read_b128 v[%d:%d], v5" % (HD, HD + 3)); e("ds_read_b32 v6, v6"); e("ds_read_b32 v7, v%d offset:%d" % (EV, CNT))
e("s_waitcnt lgkmcnt(0)")
e("v_readlane_b32 s47, v7, 63")
e("s_mov_b32 s57, %d" % (NQ - 1)); e("s_mov_b32 s48, 0")
if P["BAR"] == 2:
    for n, t in enumerate(str(P.get("TH", "t48c"))[1:]): e("s_mul_i32 s%d, s47, %d" % (49 + n, int(t, 16)))
    e("s_setprio 3")
e("v_readfirstlane_b32 s56, v6"); stamp(4)
for i in range(4): e("v_lshlrev_b32 v%d, 3, v%d" % (HD + i, HD + i))
SYNC = P["SYNC"]
if not SYNC:
    for k in range(NQ - 2, -1, -1):
        e("v_cmp_eq_u32 vcc, 0, v%d" % (HD + k)); e("s_nop 1")
        for j in range(k, NQ - 1): e("v_cndmask_b32 v%d, v%d, v%d, vcc" % (HD + j, HD + j, HD + j + 1))
        e("v_cndmask_b32 v%d, v%d, 0, vcc" % (HD + NQ - 1, HD + NQ - 1))
else:
    e("s_mov_b32 s57, %d" % (NQ - 1))
e("ds_read_b64 v[%d:%d], v%d offset:%d" % (REC, REC + 1, HD, RB))
QP = ["quad_perm:[0,0,2,2] row_mask:0xf bank_mask:0xf", "quad_perm:[1,1,3,3] row_mask:0xf bank_mask:0xf"]
def perms(k):
    for j in range(8):
        r = ROW + 8 * k + j
        e("v_perm_b32 v%d, v%d, v%d, s30" % (UN + 2 * j, r + 8, r)); e("v_perm_b32 v%d, v%d, v%d, s31" % (UN + 2 * j + 1, r + 8, r))
def dots(k, h):
    if P["FM"] == 2: return
    for l in range(2):
        for f in range(8): e("v_dot2c_f32_bf16_dpp v%d, v%d, v%d %s" % (ACC + 16 * l + 8 * h + f, CW + k + l, UN + 8 * h + f, QP[h]))
def cperm(k):
    for l in range(2): e("v_perm_b32 v%d, v%d, v%d, s%d" % (CW + k + l, REC + 2 * k + 3, REC + 2 * k + 1, 30 + l))
def chase(k):
    r = REC + 2 * k; n = REC + 2 * ((k + 1) % D)
    e("s_waitcnt lgkmcnt(0)")
    e("v_lshrrev_b32 v5, 9, v%d" % r); e("v_and_b32 v5, %s, v5" % (P["HACK"] * 32 if P.get("HACK") else "-32"))
    e("v_lshlrev_b32 v%d, 3, v%d" % (HD, r)); e("v_and_b32 v%d, s54, v%d" % (HD, HD))
    e("v_add_u32_dpp v6, v5, v14 " + QP[0]); e("v_add_u32_dpp v7, v5, v14 " + QP[1])
    e("v_cmp_eq_u32 vcc, 0, v%d" % HD)
    e("buffer_load_dwordx4 v[%d:%d], v6, s[16:19], 0 offen" % (ROW + 8 * k, ROW + 8 * k + 3))
    e("buffer_load_dwordx4 v[%d:%d], v7, s[16:19], 0 offen" % (ROW + 8 * k + 4, ROW + 8 * k + 7))
    for j in range(NQ - 1): e("v_cndmask_b32 v%d, v%d, v%d, vcc" % (HD + j, HD + j, HD + j + 1))
    e("v_cndmask_b32 v%d, v%d, 0, vcc" % (HD + NQ - 1, HD + NQ - 1))
    e("ds_read_b64 v[%d:%d], v%d offset:%d" % (n, n + 1, HD, RB))
def check(k, tag):
    e("v_cmp_ne_u32 vcc, 0, v%d" % HD)
    cperm(k)
    e("s_add_u32 s48, s48, 32")
    e("s_cbranch_vccz G_DR%s" % tag)
    e("s_cmp_lt_u32 s48, s49"); e("s_cbranch_scc1 G_NB%s" % tag)
    e("s_mov_b32 s49, s50"); e("s_mov_b32 s50, s51"); e("s_mov_b32 s51, -1")
    if P.get("RP"): prefetch()
    e("s_setprio 2"); e("s_cmp_lg_u32 s50, -1"); e("s_cbranch_scc1 G_NB%s" % tag)
    e("s_setprio 1"); e("s_cmp_lg_u32 s49, -1"); e("s_cbranch_scc1 G_NB%s" % tag)
    e("s_setprio 0")
    e("G_NB%s:" % tag)
assert D % 2 == 0 and D >= 4 and P["BAR"] == 2 and not SYNC
e("s_movk_i32 s62, 0x2000"); e("s_mov_b32 s30, 0x05040100"); e("s_mov_b32 s31, 0x07060302")
for k in range(0, D, 2): chase(k); chase(k + 1); check(k, "P%d" % k)
if P.get("RP") == 1: prefetch()
e("G_LOOP:")
for k in range(0, D, 2):
    e("s_waitcnt vmcnt(%d)" % (2 * (D - 2)))
    perms(k); chase(k); dots(k, 0); chase(k + 1); dots(k, 1); check(k, "L%d" % k)
e("s_sub_u32 s62, s62, 1"); e("s_cbranch_scc0 G_LOOP"); e("s_branch G_DRL%d" % (D - 2))
def drain(ks):
    for n, k in enumerate(ks):
        e("s_waitcnt vmcnt(%d)" % (4 * (len(ks) - 1 - n))); perms(k); dots(k, 0); dots(k, 1)
    e("s_branch G_DONE")
for k in range(0, D - 2, 2):
    e("G_DRP%d:" % k); drain(list(range(0, k + 1, 2)))
e("G_DRP%d:" % (D - 2))
for k in range(D - 2, -1, -2):
    e("G_DRL%d:" % k); drain([(k + 2 + j) % D for j in range(0, D, 2)])
e("G_DONE:"); e("s_nop 2"); e("s_waitcnt lgkmcnt(0)")
if P["BAR"] == 1:
    e("s_cmp_eq_u32 s57, 0"); e("s_cbranch_scc1 G_DN2"); e("s_sub_u32 s57, s57, 1"); e("s_barrier"); e("s_branch G_DONE"); e("G_DN2:")
e("s_cmp_le_u32 s56, s44"); e("s_cbranch_scc1 G_EPI")
e("s_add_u32 s44, s44, 1"); e("s_waitcnt lgkmcnt(0)"); e("s_barrier")
e("s_branch G_ROUND")
e("G_EPI:"); stamp(5)
RBF = 48; HI = 56; DD = 72; G = 88; U = ACC + 16
e("v_lshlrev_b32 v5, 2, v%d" % EV)
e("ds_read_b128 v[%d:%d], v5 offset:%d" % (RBF, RBF + 3, RBL))
for j in range(16): e("v_cvt_pk_bf16_f32 v%d, v%d, v%d" % (HI + j, ACC + 2 * j, ACC + 2 * j + 1))
SW = "quad_perm:[1,0,3,2] row_mask:0xf bank_mask:0xf"
e("s_mov_b32 vcc_lo, 0x55555555"); e("s_mov_b32 vcc_hi, 0x55555555")
for j in range(4): e("v_mov_b32 v%d, 0" % (RBF + 4 + j))
for n, b in enumerate((HI, HI + 8)):
    for j in range(4): e("v_cndmask_b32_dpp v%d, v%d, v%d, vcc %s" % (ACC + 8 * n + j, b + 4 + j, b + j, SW))
e("s_not_b64 vcc, vcc")
for n, b in enumerate((HI, HI + 8)):
    for j in range(4): e("v_cndmask_b32_dpp v%d, v%d, v%d, vcc %s" % (ACC + 8 * n + 4 + j, b + j, b + 4 + j, SW))
HI = ACC
e("s_waitcnt lgkmcnt(0)")
for j in range(4): e("v_permlane32_swap_b32 v%d, v%d" % (RBF + j, RBF + 4 + j))
for b in (HI, HI + 8):
    for j in range(4): e("v_permlane32_swap_b32 v%d, v%d" % (b + j, b + 4 + j))
def mf(d, a, b, c):
    e("v_mfma_f32_32x32x16_bf16 v[%d:%d], v[%d:%d], v[%d:%d], %s" % (d, d + 15, a, a + 3, b, b + 3, c if c == "0" else "v[%d:%d]" % (c, c + 15)))
for h in range(2):
    e("s_nop 1")
    mf(DD, W, HI + 4 * h, "0"); mf(G, W + 8, RBF + 4 * h, "0")
    mf(DD, W + 4, HI + 8 + 4 * h, DD)
    mf(U, W + 16, RBF + 4 * h, "0")
    e("s_nop 11")
    for j in range(4):
        e("v_pk_mul_f32 v[%d:%d], v[%d:%d], v[%d:%d]" % (G + 2 * j, G + 2 * j + 1, G + 2 * j, G + 2 * j + 1, DD + 2 * j, DD + 2 * j + 1))
    for j in range(4):
        e("v_pk_fma_f32 v[%d:%d], v[%d:%d], v[%d:%d], v[%d:%d]" % (G + 2 * j, G + 2 * j + 1, G + 8 + 2 * j, G + 9 + 2 * j, DD + 8 + 2 * j, DD + 9 + 2 * j, G + 2 * j, G + 2 * j + 1))
    for j in range(4): e("v_cvt_pk_bf16_f32 v%d, v%d, v%d" % (DD + j, G + 2 * j, G + 2 * j + 1))
    e("s_nop 1")
    mf(U, W + 12, DD, U)
    for j in range(4):
        m = MM + 4 * h + j
        e("v_lshlrev_b32 v%d, 16, v%d" % (G + 2 * j, m)); e("v_and_b32 v%d, s52, v%d" % (G + 2 * j + 1, m))
    e("s_nop 7")
    for j in range(4):
        e("v_pk_fma_f32 v[%d:%d], v[%d:%d], v[%d:%d], v[%d:%d]" % (G + 2 * j, G + 2 * j + 1, U + 2 * j, U + 2 * j + 1, U + 8 + 2 * j, U + 9 + 2 * j, G + 2 * j, G + 2 * j + 1))
    for j in range(4): e("v_cvt_pk_bf16_f32 v%d, v%d, v%d" % (MM + 4 * h + j, G + 2 * j, G + 2 * j + 1))
    e("buffer_store_dwordx4 v[%d:%d], v%d, s[32:35], s39 offen %s" % (MM + 4 * h, MM + 4 * h + 3, OA + h, P.get("OS", "")))
stamp(6); stamp_out(1, 24, 3, 5)
e("G_EXIT:"); e("s_endpgm")
e('.section .rodata,"a"')
for n, nv in (("part_kernel", 140), ("gath_kernel", NV2)):
    nv = (nv + 3) // 4 * 4
    e(".p2align 6"); e(".amdhsa_kernel %s" % n)
    e("  .amdhsa_next_free_vgpr %d" % nv); e("  .amdhsa_next_free_sgpr 80"); e("  .amdhsa_accum_offset %d" % nv)
    e("  .amdhsa_group_segment_fixed_size 0"); e("  .amdhsa_kernarg_size 112"); e("  .amdhsa_user_sgpr_count 2")
    e("  .amdhsa_user_sgpr_kernarg_segment_ptr 1"); e("  .amdhsa_system_sgpr_workgroup_id_x 1"); e(".end_amdhsa_kernel")
open(sys.argv[1], "w").write("\n".join(out) + "\n")
```

```python
import sys, struct
P = dict(D=4, ORD=1, SYNC=0, NQ=4, PF=1, ST="sc1", LD="nt", PFN=1, XM=1, FM=0, RL="", BAR=2, PRI=0)
for a in sys.argv[2:]:
    k, v = a.split("=")
    P[k] = int(v) if v.lstrip("-").isdigit() else v
out = []
def e(s=""): out.append(s)
NAME = "gather_scatter__molecular_angular_gemnet__graph"
E, T = 160000, 2560000
NCH, CH = 256, 10000
NB, BE = 256, 625
CSTR = 62464
WS_DESC = NCH * CSTR
WS_W = WS_DESC + NCH * 1024
WS_SZ = WS_W + 5 * 1024
MDIV = (2**32 + BE - 1) // BE
assert MDIV < 2**24 and all((o * MDIV) >> 32 == o // BE for o in range(E))
NQ = P["NQ"]
MQ = (2**32 * NQ) // E
assert (E - 1) * MQ >> 32 == NQ - 1 and MQ < 2**24
TRASH = 2560
hdr = open("cdna_kernels/%s.s.ref" % NAME).read().split("; Override")[0]
e(hdr.rstrip())
L1 = max(2064 + CSTR, P.get("L1", 83968))
CAPW = 1280
SCR = 10272
CNT = SCR + 2576; BIN = CNT + 2576; PERM = BIN + 256
RBL = PERM + 2560
RB = RBL + 10240
L2 = RB + 16 + 10 * CAPW * 8
e("; @launch kernel=part_kernel grid=(256,1,1) block=(512,1,1) lds=%d" % L1)
e("; @launch kernel=gath_kernel grid=(256,1,1) block=(640,1,1) lds=%d" % L2)
e('.amdgcn_target "amdgcn-amd-amdhsa--gfx950"')
e(".text")
def srd(d, b, size, stride=0):
    e("s_mov_b32 s%d, s%d" % (d, b))
    if stride: e("s_or_b32 s%d, s%d, 0x%x" % (d + 1, b + 1, stride << 16))
    else: e("s_mov_b32 s%d, s%d" % (d + 1, b + 1))
    e("s_mov_b32 s%d, %d" % (d + 2, size))
    e("s_mov_b32 s%d, 0x00020000" % (d + 3))
def scan(v):
    for sh in (1, 2, 4, 8):
        e("s_nop 1")
        e("v_add_u32_dpp v%d, v%d, v%d row_shr:%d row_mask:0xf bank_mask:0xf bound_ctrl:0" % (v, v, v, sh))
    e("s_nop 1")
    e("v_add_u32_dpp v%d, v%d, v%d row_bcast:15 row_mask:0xa bank_mask:0xf" % (v, v, v))
    e("s_nop 1")
    e("v_add_u32_dpp v%d, v%d, v%d row_bcast:31 row_mask:0xc bank_mask:0xf" % (v, v, v))
WS_ST = 64 << 20
def stamp(i):
    if P.get("STAMP"):
        e("s_waitcnt lgkmcnt(0)"); e("s_memrealtime s[%d:%d]" % (64 + 2 * i, 65 + 2 * i)); e("s_waitcnt lgkmcnt(0)")
def stamp_out(k, srd0, wreg, sh):
    if P.get("STAMP"):
        e("s_waitcnt vmcnt(0)"); stamp(7)
        for i in range(8): e("v_mov_b32 v%d, s%d" % (8 + i, 64 + 2 * i))
        e("s_lshl_b32 s63, s2, 9"); e("s_lshl_b32 s62, s%d, %d" % (wreg, sh)) if sh >= 0 else e("s_lshr_b32 s62, s%d, %d" % (wreg, -sh))
        e("s_add_u32 s63, s63, s62"); e("s_add_u32 s63, s63, %d" % (WS_ST + k * (1 << 20)))
        e("s_mov_b32 s%d, 0x8000000" % (srd0 + 2)); e("v_mov_b32 v7, 0"); e("s_mov_b64 exec, 1")
        e("buffer_store_dwordx4 v[8:11], v7, s[%d:%d], s63 offen" % (srd0, srd0 + 3))
        e("buffer_store_dwordx4 v[12:15], v7, s[%d:%d], s63 offen offset:16" % (srd0, srd0 + 3))
def kstart(n):
    e(".globl %s" % n); e(".p2align 8"); e(".type %s,@function" % n); e("%s:" % n)

HIST, BASE, STG = 0, 1024, 2064
BCAP, BSTR = 84, 528
kstart("part_kernel")
e("s_cmp_ge_u32 s2, %d" % NCH); e("s_cbranch_scc1 P_EXIT")
stamp(0)
e("s_load_dwordx4 s[4:7], s[0:1], 8")
e("s_load_dwordx2 s[8:9], s[0:1], 32")
e("s_load_dwordx2 s[10:11], s[0:1], 104")
e("s_load_dwordx8 s[40:47], s[0:1], 56")
e("v_lshlrev_b32 v1, 4, v0"); e("v_lshlrev_b32 v2, 3, v0"); e("v_lshlrev_b32 v3, 2, v0")
e("v_mov_b32 v4, 0"); e("v_mov_b32 v5, 1")
e("v_readfirstlane_b32 s35, v0")
e("ds_write_b32 v3, v4")
e("v_cmp_gt_u32 vcc, %d, v0" % (CH // 4 - 2048))
e("s_mul_i32 s28, s2, %d" % (CH * 4)); e("s_mul_i32 s29, s2, %d" % (CH * 2))
e("s_mov_b64 s[36:37], vcc")
e("s_waitcnt lgkmcnt(0)")
srd(12, 4, T * 4); srd(16, 6, T * 4); srd(20, 8, T * 2); srd(24, 10, WS_SZ)
PT = 128
e("v_mov_b32 v%d, 0" % (PT + 8))
e("s_cmp_lg_u32 s35, 448"); e("s_cbranch_scc1 P_NOPREP"); e("s_cmp_ge_u32 s2, 5"); e("s_cbranch_scc1 P_NOPREP")
e("v_and_b32 v8, 3, v0"); e("v_bfe_u32 v9, v0, 2, 1"); e("v_lshl_add_u32 v8, v9, 3, v8")
e("v_bfe_u32 v9, v0, 3, 1"); e("v_lshl_add_u32 v8, v9, 2, v8"); e("v_lshlrev_b32 v8, 1, v8")
e("v_bfe_u32 v9, v0, 4, 1"); e("v_bfe_u32 v13, v0, 5, 1")
e("v_xor_b32 v14, 1, v9")
e("v_lshl_add_u32 v15, v13, 8, v8")
e("v_lshl_add_u32 v10, v9, 20, v15")
e("v_lshl_add_u32 v11, v14, 20, v15")
e("v_lshl_add_u32 v12, v9, 5, v8"); e("v_lshl_add_u32 v12, v13, 20, v12")
imgs = [(10, 44, 512, 32), (11, 44, 512, 32), (12, 42, 512, 64), (10, 46, 512, 32), (11, 40, 256, 32)]
for n, (va, sp, sz, st) in enumerate(imgs):
    if n < 4: e("s_cmp_lg_u32 s2, %d" % n); e("s_cbranch_scc1 P_IM%d" % (n + 1))
    srd(48, sp, sz)
    for j in range(8): e("buffer_load_ushort v%d, v%d, s[48:51], 0 offen offset:%d" % (PT + j, va, j * st))
    if n < 4: e("s_branch P_NOPREP"); e("P_IM%d:" % (n + 1))
e("P_NOPREP:")
VO, VI, VA, VR = 8, 28, 48, 60
VB = 80
LD = P["LD"].replace("+"," "); P["ST"] = P["ST"].replace("+"," ")
def tail(g, on):
    if g == 4: e("s_mov_b64 exec, %s" % ("s[36:37]" if on else "-1"))
def ldo(g):
    tail(g, 1); e("s_add_u32 s30, s28, %d" % (g * 8192))
    e("buffer_load_dwordx4 v[%d:%d], v1, s[16:19], s30 offen %s" % (VO + 4 * g, VO + 4 * g + 3, LD)); tail(g, 0)
def ldai(g):
    tail(g, 1); e("s_add_u32 s30, s29, %d" % (g * 4096))
    e("buffer_load_dwordx2 v[%d:%d], v2, s[20:23], s30 offen %s" % (VA + 2 * g, VA + 2 * g + 1, LD))
    e("s_add_u32 s30, s28, %d" % (g * 8192))
    e("buffer_load_dwordx4 v[%d:%d], v1, s[12:15], s30 offen %s" % (VI + 4 * g, VI + 4 * g + 3, LD)); tail(g, 0)
seq = {0: "o0 o1 a0 o2 a1 o3 a2 o4 a3 a4", 1: "o0 o1 o2 a0 o3 a1 o4 a2 a3 a4", 2: "o0 o1 o2 o3 o4 a0 a1 a2 a3 a4"}[P.get("SEQ", 2)].split()
LA = P.get("LA", 5)
pos = {}; nld = 0
def issue(upto):
    global nld
    for x in seq[:upto]:
        if x not in pos: (ldo if x[0] == "o" else ldai)(int(x[1])); nld += 1 if x[0] == "o" else 2; pos[x] = nld
issue(LA)
e("s_mov_b32 s31, %d" % MDIV); e("s_mov_b32 s32, %d" % MQ); e("s_mov_b32 s33, %d" % -BE); e("s_movk_i32 s34, %d" % (BSTR // 4))
e("s_movk_i32 s39, %d" % BCAP)
e("s_barrier")
def put(i, j, a):
    t = 120 + 2 * j
    e("v_and_b32 v7, 2, v6"); e("v_add_u32 v%d, v7, v6" % t); e("v_mad_i32_i24 v%d, v7, -2, v6" % (t + 1))
    e("ds_write_b32 v%d, v%d offset:%d" % (t, VI + i, STG))
    e("ds_write_b16%s v%d, v%d offset:%d" % (("", "_d16_hi")[j % 2], t + 1, a, STG + 4))
for g in range(5):
    e("s_waitcnt vmcnt(%d)" % (nld - pos["o%d" % g])); issue(LA + g + 1); tail(g, 1)
    for j in range(4):
        i = 4 * g + j
        e("v_mul_hi_u32_u24 v%d, s31, v%d" % (VB + i, VO + i))
        e("v_lshlrev_b32 v%d, 2, v%d" % (VB + i, VB + i))
        e("ds_add_rtn_u32 v%d, v%d, v5" % (VR + i, VB + i))
    tail(g, 0)
assert nld == 15
e("v_and_b32 v6, 63, v0"); e("v_lshlrev_b32 v6, 4, v6")
e("s_waitcnt lgkmcnt(0)"); e("s_barrier")
stamp(1)
e("ds_read_b128 v[100:103], v6")
e("s_waitcnt lgkmcnt(0)")
for j in range(4):
    e("v_add_u32 v%d, 1, v%d" % (104 + j, 100 + j)); e("v_lshrrev_b32 v%d, 1, v%d" % (104 + j, 104 + j))
e("v_add_u32 v109, v104, v105"); e("v_add_u32 v110, v109, v106"); e("v_add_u32 v7, v110, v107")
e("v_mov_b32 v111, v7")
scan(7)
e("v_sub_u32 v108, v7, v111")
e("v_add_u32 v111, v108, v110"); e("v_add_u32 v110, v108, v109"); e("v_add_u32 v109, v108, v104")
for j in range(4): e("v_mul_u32_u24 v%d, 12, v%d" % (112 + j, 108 + j))
e("ds_write_b128 v6, v[112:115] offset:%d" % BASE)
e("s_cmp_lg_u32 s35, 0"); e("s_cbranch_scc1 P_NOTW0")
for j in range(4): e("v_lshrrev_b32 v7, 2, v%d" % (112 + j)); e("v_lshl_or_b32 v%d, v%d, 16, v7" % (PT + j, 104 + j))
e("s_lshl_b32 s30, s2, 10"); e("s_add_u32 s30, s30, %d" % WS_DESC)
e("buffer_store_dwordx4 v[%d:%d], v6, s[24:27], s30 offen" % (PT, PT + 3))
e("v_mov_b32 v120, %d" % TRASH); e("v_mov_b32 v121, -14")
for j in range(4):
    e("v_and_b32 v122, 1, v%d" % (100 + j)); e("v_cmp_eq_u32 vcc, 1, v122")
    e("v_mad_u32_u24 v122, v%d, 6, v%d" % (100 + j, 112 + j)); e("s_nop 0")
    e("v_cndmask_b32 v122, v121, v122, vcc"); e("v_add_u32 v122, %d, v122" % (STG + 2))
    e("ds_write_b32 v122, v120")
e("P_NOTW0:")
stamp(2)
for g in range(5):
    tail(g, 1)
    for j in range(4): e("ds_read_b32 v%d, v%d offset:%d" % (100 + 4 * g + j, VB + 4 * g + j, BASE))
    tail(g, 0)
for g in range(5):
    e("s_waitcnt vmcnt(%d)" % (nld - pos["a%d" % g])); tail(g, 1)
    for j in range(4):
        i = 4 * g + j
        e("v_mul_hi_u32_u24 v6, s32, v%d" % (VI + i))
        e("v_lshl_add_u32 v6, v%d, 2, v6" % (VO + i))
        e("v_mad_i32_i24 v6, v%d, s33, v6" % (VB + i))
        e("v_lshl_add_u32 v%d, v%d, 14, v6" % (VI + i, VI + i))
        if g == 0 and j == 0: e("s_waitcnt lgkmcnt(0)")
        e("v_mad_u32_u24 v6, v%d, 6, v%d" % (VR + i, 100 + i)); put(i, j, VA + 2 * g + j // 2)
    tail(g, 0)
e("s_mul_i32 s28, s2, %d" % CSTR)
e("s_waitcnt lgkmcnt(0)"); e("s_barrier")
stamp(3)
for g in range(7):
    e("ds_read_b128 v[%d:%d], v1 offset:%d" % (8 + 4 * g, 11 + 4 * g, STG + g * 8192))
for g in range(7):
    e("s_add_u32 s30, s28, %d" % (g * 8192))
    e("s_waitcnt lgkmcnt(%d)" % (6 - g))
    e("buffer_store_dwordx4 v[%d:%d], v1, s[24:27], s30 offen %s" % (8 + 4 * g, 11 + 4 * g, P["ST"]))
stamp(4)
e("s_cmp_ge_u32 s35, %d" % ((CSTR - 7 * 8192) // 16)); e("s_cbranch_scc1 P_PR2")
e("ds_read_b128 v[48:51], v1 offset:%d" % (STG + 7 * 8192))
e("s_add_u32 s30, s28, %d" % (7 * 8192))
e("s_waitcnt lgkmcnt(0)")
e("buffer_store_dwordx4 v[48:51], v1, s[24:27], s30 offen %s" % P["ST"])
e("P_PR2:")
e("s_cmp_lg_u32 s35, 448"); e("s_cbranch_scc1 P_FIN"); e("s_cmp_ge_u32 s2, 5"); e("s_cbranch_scc1 P_FIN")
for j in range(4): e("v_lshl_or_b32 v%d, v%d, 16, v%d" % (PT + 8 + j, PT + 1 + 2 * j, PT + 2 * j))
e("s_lshl_b32 s30, s2, 10"); e("s_add_u32 s30, s30, %d" % (WS_W - 448 * 16))
e("buffer_store_dwordx4 v[%d:%d], v1, s[24:27], s30 offen" % (PT + 8, PT + 11))
e("P_FIN:"); stamp_out(0, 24, 35, -1)
e("P_EXIT:"); e("s_endpgm")

D = P["D"]
ACC = 16; ROW = 48; CW = ROW + 8 * D; REC = CW + D; HD = REC + 2 * D
UN = HD + 4
LNK = 48
PFV = max(UN + 16, 118); EV = PFV + 1; W = EV + 1; MM = W + 20; OA = MM + 8; NV2 = OA + 2
MORE = 10256
kstart("gath_kernel")
e("s_cmp_ge_u32 s2, %d" % NB); e("s_cbranch_scc1 G_EXIT")
stamp(0)
e("s_lshr_b32 s63, s2, 3")
if P["XM"]:
    e("s_and_b32 s4, s2, 7"); e("s_lshl_b32 s4, s4, 5"); e("s_add_u32 s2, s4, s63")
e("s_mul_i32 s63, s63, %d" % (((E * 32 // 128 // P.get("PFQ", NQ) + 31) // 32) * 128))
e("s_load_dwordx2 s[4:5], s[0:1], 0")
e("s_load_dwordx2 s[6:7], s[0:1], 24")
e("s_load_dwordx2 s[8:9], s[0:1], 88")
e("s_load_dwordx2 s[10:11], s[0:1], 104")
e("s_load_dwordx2 s[36:37], s[0:1], 40")
e("v_lshrrev_b32 v2, 6, v0"); e("v_and_b32 v4, 63, v0")
e("v_readfirstlane_b32 s3, v2")
e("v_lshlrev_b32 v1, 4, v4")
e("v_min_u32 v3, 6, v2"); e("v_mad_u32_u24 v2, v2, 25, v3"); e("v_add_u32 v2, v2, v4")
e("v_lshlrev_b32 v5, 10, v2"); e("v_mov_b32 v3, 0"); e("v_mov_b32 v15, 1")
e("s_lshl_b32 s30, s2, 2"); e("s_add_u32 s30, s30, %d" % WS_DESC)
e("s_waitcnt lgkmcnt(0)")
srd(24, 10, WS_SZ)
e("s_cmp_lt_u32 s3, 6"); e("s_mov_b32 s38, 0x1ffffff"); e("s_cselect_b32 exec_lo, 0x3ffffff, s38"); e("s_mov_b32 exec_hi, 0")
e("buffer_load_dword v3, v5, s[24:27], s30 offen")
e("s_mov_b64 exec, -1")
e("s_load_dwordx4 s[40:43], s[36:37], 0")
srd(16, 4, E * 32); srd(20, 6, E * 2); srd(32, 8, E * 32)
PFQ = P.get("PFQ", NQ)
PFL = (E * 32 // 128 // PFQ + 31) // 32
def prefetch():
    e("buffer_load_dword v12, v%d, s[16:19], 0 offen" % PFV)
    e("v_add_u32 v%d, %d, v%d" % (PFV, PFL * 32 * 128, PFV))
e("v_cmp_gt_u32 vcc, %d, v0" % PFL)
e("v_lshl_add_u32 v7, v0, 7, s63"); e("v_bfrev_b32 v%d, 1" % PFV); e("v_cndmask_b32 v%d, v%d, v7, vcc" % (PFV, PFV))
PF0 = P.get("PF0", 0)
if P.get("B0", 1): e("s_barrier")
for _ in range(PF0): prefetch()
e("s_mul_i32 s31, s2, %d" % (BE * 2)); e("v_min_u32 v5, %d, v0" % (BE - 1)); e("v_lshlrev_b32 v5, 1, v5")
e("buffer_load_ushort v%d, v5, s[20:23], s31 offen" % OA)
e("s_mov_b32 s31, %d" % WS_W)
for n in range(5):
    e("buffer_load_dwordx4 v[%d:%d], v1, s[24:27], s31 offen offset:%d" % (W + 4 * n, W + 4 * n + 3, 1024 * n if n < 4 else 0))
    if n == 3: e("s_add_u32 s31, s31, 4096")
e("v_mul_u32_u24 v2, %d, v2" % CSTR)
for i in range(32): e("v_mov_b32 v%d, 0" % (ACC + i))
e("v_mov_b32 v5, 0xffffc000"); e("v_mov_b32 v6, %d" % RB)
e("ds_write2_b32 v6, v5, v16 offset0:0 offset1:1")
e("v_mov_b32 v6, %d" % MORE); e("ds_write_b32 v6, v16")
e("s_mov_b32 s44, 0")
e("v_mov_b32 v%d, 0" % EV); e("v_mov_b32 v%d, 0" % (OA + 1)); e("s_mul_i32 s39, s2, %d" % (BE * 32))
e("s_mov_b32 s52, 0xffff0000"); e("s_movk_i32 s53, 0x3fff"); e("s_mov_b32 s54, 0x1fff8")
e("s_mul_i32 s55, s3, %d" % (CAPW * 8)); e("s_add_u32 s55, s55, %d" % (RB + 16))
e("s_lshl_b32 s45, s3, 8"); e("s_add_u32 s45, s45, %d" % SCR)
e("v_lshl_add_u32 v13, v4, 2, s45")
e("v_and_b32 v14, 1, v4"); e("v_lshlrev_b32 v14, 4, v14")
e("s_waitcnt vmcnt(%d)" % (6 + PF0))
e("v_and_b32 v5, 0xffff, v3"); e("v_lshl_add_u32 v2, v5, 2, v2"); e("v_lshrrev_b32 v3, 16, v3")
stamp(1)
e("G_ROUND:")
e("v_lshlrev_b32 v5, 4, v0")
for i in range(4): e("v_mov_b32 v%d, 0" % (8 + i))
e("ds_write_b32 v13, v8")
e("ds_write_b128 v5, v[8:11]")
e("v_lshlrev_b32 v5, 2, v0"); e("ds_write_b32 v5, v8 offset:%d" % CNT); e("ds_write_b32 v5, v8 offset:%d" % (BIN - 16))
e("v_mov_b32 v7, v3")
for sh in (1, 2, 4, 8):
    e("s_nop 1"); e("v_add_u32_dpp v7, v7, v7 row_shr:%d row_mask:0xf bank_mask:0xf bound_ctrl:0" % sh)
e("s_nop 1"); e("v_add_u32_dpp v7, v7, v7 row_bcast:15 row_mask:0xa bank_mask:0xf")
e("v_sub_u32 v6, v7, v3")
e("v_min_u32 v7, %d, v7" % (CAPW // 2)); e("v_min_u32 v6, %d, v6" % (CAPW // 2))
e("v_sub_u32 v8, v7, v6")
e("v_readlane_b32 s49, v7, 31")
e("v_cmp_lt_u32 vcc, 0, v8")
e("v_mul_u32_u24 v9, 12, v6"); e("v_sub_u32 v9, v2, v9")
e("v_mbcnt_lo_u32_b32 v10, vcc_lo, 0"); e("v_lshl_add_u32 v10, v10, 2, s45")
e("v_subrev_u32 v6, 1, v6")
e("v_lshlrev_b32 v11, v6, v15")
e("v_ashrrev_i32 v6, 5, v6"); e("v_lshl_add_u32 v6, v6, 2, s45")
e("s_mov_b64 exec, vcc")
e("ds_write_b32 v10, v9 offset:128")
e("ds_or_b32 v6, v11 offset:4")
e("s_mov_b64 exec, -1")
e("ds_read_b32 v6, v13 offset:4")
e("v_mad_u32_u24 v2, v8, 12, v2"); e("v_sub_u32 v3, v3, v8")
e("v_cmp_lt_u32 vcc, 0, v3")
e("s_add_u32 s50, s49, 63"); e("s_lshr_b32 s50, s50, 6")
e("s_mov_b32 s46, vcc_lo")
e("s_sub_u32 s51, 0, s49"); e("s_and_b32 s51, s51, 63"); e("s_lshr_b64 s[58:59], -1, s51")
e("s_lshr_b32 s47, s45, 2"); e("s_add_u32 s47, s47, 32")
e("s_waitcnt lgkmcnt(0)")
AD = 88; XR = 98
for i in range(10):
    e("v_readlane_b32 s60, v6, %d" % (2 * i)); e("v_readlane_b32 s61, v6, %d" % (2 * i + 1))
    e("v_mov_b32 v7, s47"); e("s_nop 0")
    e("v_mbcnt_lo_u32_b32 v7, s60, v7"); e("v_mbcnt_hi_u32_b32 v7, s61, v7")
    e("s_bcnt1_i32_b64 s48, s[60:61]"); e("v_lshlrev_b32 v7, 2, v7"); e("s_add_u32 s47, s47, s48")
    e("ds_read_b32 v%d, v7" % (AD + i))
e("s_mov_b32 s48, 0")
for i in range(10):
    e("s_waitcnt lgkmcnt(%d)" % (9 - i))
    e("v_mad_u32_u24 v%d, v4, 12, v%d" % (AD + i, AD + i))
    if i == 5: e("s_add_u32 s48, s48, %d" % (5 * 768))
    e("s_cmp_gt_u32 s50, %d" % i); e("s_cselect_b64 exec, -1, 1")
    e("buffer_load_dwordx3 v[%d:%d], v%d, s[24:27], s48 offen offset:%d %s" % (LNK + 4 * i, LNK + 4 * i + 2, AD + i, (i % 5) * 768, P["RL"].replace("+", " ")))
e("s_mov_b64 exec, -1")
e("G_F3:")
NAFT = 0
e("s_cmp_lg_u32 s44, 0"); e("s_cbranch_scc1 G_NORBF")
e("s_waitcnt vmcnt(15)")
e("v_lshlrev_b32 v6, 16, v%d" % OA)
e("s_mov_b32 s30, 0xc1200000"); e("s_mov_b32 s31, 0x3fb8aa3b")
for j in range(4):
    e("s_lshl_b32 s60, s%d, 16" % (40 + j)); e("s_and_b32 s61, s%d, 0xffff0000" % (40 + j))
    e("v_subrev_f32 v8, s60, v6"); e("v_subrev_f32 v9, s61, v6")
    def rnd():
        e("v_cvt_pk_bf16_f32 v9, v8, v9"); e("v_lshlrev_b32 v8, 16, v9"); e("v_and_b32 v9, s52, v9")
    rnd(); e("v_mul_f32 v8, v8, v8"); e("v_mul_f32 v9, v9, v9")
    rnd(); e("v_mul_f32 v8, s30, v8"); e("v_mul_f32 v9, s30, v9")
    rnd(); e("v_mul_f32 v8, s31, v8"); e("v_mul_f32 v9, s31, v9")
    e("v_exp_f32 v8, v8"); e("v_exp_f32 v9, v9"); e("s_nop 0")
    e("v_cvt_pk_bf16_f32 v%d, v8, v9" % (MM + j))
e("v_lshlrev_b32 v5, 4, v0")
e("ds_write_b128 v5, v[%d:%d] offset:%d" % (MM, MM + 3, RBL))
e("G_NORBF:")
stamp(2)
e("s_waitcnt lgkmcnt(0)"); e("s_barrier")
e("s_cmp_eq_u32 s46, 0"); e("s_cbranch_scc1 G_NOMORE")
e("s_add_u32 s30, s44, 1"); e("v_mov_b32 v5, s30"); e("v_mov_b32 v6, %d" % MORE); e("ds_max_u32 v6, v5")
e("G_NOMORE:")
e("v_add_u32 v5, s55, v1")
e("v_subrev_u32 v6, %d, v5" % RB); e("v_lshrrev_b32 v6, 3, v6")
e("s_mov_b32 s30, 0x3e22f983"); e("s_mov_b32 s31, s30"); e("s_mov_b32 s60, -1.0"); e("s_mov_b32 s61, -1.0")
def lwrite(i):
    r = LNK + 4 * i
    e("v_bfi_b32 v%d, s53, v%d, v%d" % (r, XR + 2 * i, r)); e("v_bfi_b32 v%d, s53, v%d, v%d" % (r + 2, XR + 2 * i + 1, r + 2))
    e("ds_write_b128 v5, v[%d:%d] offset:%d" % (r, r + 3, 1024 * i))
for i in range(10):
    r = LNK + 4 * i
    e("s_cmp_le_u32 s50, %d" % i); e("s_cbranch_scc1 G_LE%d" % i)
    e("s_cmp_eq_u32 s50, %d" % (i + 1)); e("s_cselect_b64 exec, s[58:59], -1")
    e("s_waitcnt vmcnt(%d)" % (9 - i))
    e("v_and_b32 v8, s53, v%d" % r); e("v_and_b32 v9, s53, v%d" % (r + 2))
    e("v_and_b32 v10, -4, v8"); e("v_and_b32 v11, -4, v9")
    e("v_lshlrev_b32 v8, 2, v8"); e("v_lshlrev_b32 v9, 2, v9"); e("v_add_u32 v7, 1, v6")
    e("ds_wrxchg_rtn_b32 v%d, v8, v6" % (XR + 2 * i)); e("ds_wrxchg_rtn_b32 v%d, v9, v7" % (XR + 2 * i + 1))
    e("ds_add_u32 v10, v15 offset:%d" % CNT); e("ds_add_u32 v11, v15 offset:%d" % CNT)
    e("s_mov_b64 exec, -1")
    e("v_lshlrev_b32 v8, 16, v%d" % (r + 1)); e("v_and_b32 v9, s52, v%d" % (r + 1))
    e("v_pk_mul_f32 v[8:9], v[8:9], s[30:31]")
    e("v_cos_f32 v8, v8"); e("v_cos_f32 v9, v9")
    e("v_add_u32 v6, 128, v6")
    e("v_pk_add_f32 v[10:11], v[8:9], v[8:9]")
    e("v_pk_fma_f32 v[10:11], v[10:11], v[8:9], s[60:61]")
    e("v_cvt_pk_bf16_f32 v%d, v8, v10" % (r + 1)); e("v_cvt_pk_bf16_f32 v%d, v9, v11" % (r + 3))
    if i: e("s_waitcnt lgkmcnt(4)"); lwrite(i - 1)
for i in range(10, 0, -1):
    e("G_LE%d:" % i); e("s_waitcnt lgkmcnt(0)"); lwrite(i - 1)
    if i > 1: e("s_branch G_LE0")
e("G_LE0:")
for _ in range(P["PF"]): prefetch()
stamp(3)
e("v_lshlrev_b32 v5, 2, v0")
e("s_waitcnt lgkmcnt(0)"); e("s_barrier")
e("s_cmp_lg_u32 s44, 0"); e("s_cbranch_scc1 G_SORTED")
e("ds_read_b32 v6, v5 offset:%d" % CNT)
e("s_waitcnt lgkmcnt(0)")
e("v_min_u32 v6, 63, v6"); e("v_lshlrev_b32 v6, 2, v6")
e("ds_add_rtn_u32 v7, v6, v15 offset:%d" % BIN)
e("v_lshlrev_b32 v8, 2, v4")
e("s_waitcnt lgkmcnt(0)"); e("s_barrier")
e("ds_read_b32 v9, v8 offset:%d" % BIN)
e("s_waitcnt lgkmcnt(0)")
e("v_mov_b32 v10, v9")
scan(10)
e("v_sub_u32 v10, v10, v9")
e("ds_bpermute_b32 v10, v6, v10")
MAP = str(P.get("MAP", "m6498325701"))[1:][::-1]
assert sorted(MAP) == list("0123456789")
e("s_mov_b32 s60, 0x%s" % MAP[2:]); e("s_movk_i32 s61, 0x%s" % MAP[:2]); e("s_lshl_b32 s48, s3, 2"); e("s_lshr_b64 s[60:61], s[60:61], s48")
e("s_and_b32 s60, s60, 15")
if P["PRI"]:
    th = {1: (4, 7, 9), 2: (7, 8, 9), 3: (4, 8, 99), 4: (2, 5, 8), 5: (8, 99, 99)}[P["PRI"]]
    for n, t in enumerate(th):
        e("s_cmp_lt_u32 s%d, %d" % (60 if P["PRI"] < 3 else 3, t)); e("s_cbranch_scc1 G_PR"); e("s_setprio %d" % (n + 1))
    e("G_PR:")
e("s_lshl_b32 s60, s60, 8")
e("s_waitcnt lgkmcnt(0)")
e("v_add_lshl_u32 v10, v10, v7, 2")
e("ds_write_b32 v10, v5 offset:%d" % PERM)
e("v_add_u32 v8, s60, v8")
e("s_waitcnt lgkmcnt(0)"); e("s_barrier")
e("ds_read_b32 v%d, v8 offset:%d" % (EV, PERM))
e("s_waitcnt lgkmcnt(0)")
e("v_cmp_gt_u32 vcc, %d, v%d" % (BE * 4, EV)); e("v_lshlrev_b32 v%d, 3, v%d" % (OA, EV)); e("v_bfrev_b32 v8, 1")
e("v_cndmask_b32 v%d, v8, v%d, vcc" % (OA, OA)); e("v_add_u32 v%d, 16, v%d" % (OA + 1, OA)); e("s_nop 1")
e("v_permlane32_swap_b32 v%d, v%d" % (OA, OA + 1))
for h in range(2): e("buffer_load_dwordx4 v[%d:%d], v%d, s[16:19], s39 offen" % (MM + 4 * h, MM + 4 * h + 3, OA + h))
e("G_SORTED:")
e("v_lshlrev_b32 v5, 2, v%d" % EV); e("v_mov_b32 v6, %d" % MORE)
e("ds_read_b128 v[%d:%d], v5" % (HD, HD + 3)); e("ds_read_b32 v6, v6"); e("ds_read_b32 v7, v%d offset:%d" % (EV, CNT))
e("s_waitcnt lgkmcnt(0)")
e("v_readlane_b32 s47, v7, 63")
e("s_mov_b32 s57, %d" % (NQ - 1)); e("s_mov_b32 s48, 0")
if P["BAR"] == 2:
    for n, t in enumerate(str(P.get("TH", "t48c"))[1:]): e("s_mul_i32 s%d, s47, %d" % (49 + n, int(t, 16)))
    e("s_setprio 3")
e("v_readfirstlane_b32 s56, v6"); stamp(4)
for i in range(4): e("v_lshlrev_b32 v%d, 3, v%d" % (HD + i, HD + i))
SYNC = P["SYNC"]
if not SYNC:
    for k in range(NQ - 2, -1, -1):
        e("v_cmp_eq_u32 vcc, 0, v%d" % (HD + k)); e("s_nop 1")
        for j in range(k, NQ - 1): e("v_cndmask_b32 v%d, v%d, v%d, vcc" % (HD + j, HD + j, HD + j + 1))
        e("v_cndmask_b32 v%d, v%d, 0, vcc" % (HD + NQ - 1, HD + NQ - 1))
else:
    e("s_mov_b32 s57, %d" % (NQ - 1))
e("ds_read_b64 v[%d:%d], v%d offset:%d" % (REC, REC + 1, HD, RB))
QP = ["quad_perm:[0,0,2,2] row_mask:0xf bank_mask:0xf", "quad_perm:[1,1,3,3] row_mask:0xf bank_mask:0xf"]
def perms(k):
    for j in range(8):
        r = ROW + 8 * k + j
        e("v_perm_b32 v%d, v%d, v%d, s30" % (UN + 2 * j, r + 8, r)); e("v_perm_b32 v%d, v%d, v%d, s31" % (UN + 2 * j + 1, r + 8, r))
def dots(k, h):
    if P["FM"] == 2: return
    for l in range(2):
        for f in range(8): e("v_dot2c_f32_bf16_dpp v%d, v%d, v%d %s" % (ACC + 16 * l + 8 * h + f, CW + k + l, UN + 8 * h + f, QP[h]))
def cperm(k):
    for l in range(2): e("v_perm_b32 v%d, v%d, v%d, s%d" % (CW + k + l, REC + 2 * k + 3, REC + 2 * k + 1, 30 + l))
def chase(k):
    r = REC + 2 * k; n = REC + 2 * ((k + 1) % D)
    e("s_waitcnt lgkmcnt(0)")
    e("v_lshrrev_b32 v5, 9, v%d" % r); e("v_and_b32 v5, %s, v5" % (P["HACK"] * 32 if P.get("HACK") else "-32"))
    e("v_lshlrev_b32 v%d, 3, v%d" % (HD, r)); e("v_and_b32 v%d, s54, v%d" % (HD, HD))
    e("v_add_u32_dpp v6, v5, v14 " + QP[0]); e("v_add_u32_dpp v7, v5, v14 " + QP[1])
    e("v_cmp_eq_u32 vcc, 0, v%d" % HD)
    e("buffer_load_dwordx4 v[%d:%d], v6, s[16:19], 0 offen" % (ROW + 8 * k, ROW + 8 * k + 3))
    e("buffer_load_dwordx4 v[%d:%d], v7, s[16:19], 0 offen" % (ROW + 8 * k + 4, ROW + 8 * k + 7))
    for j in range(NQ - 1): e("v_cndmask_b32 v%d, v%d, v%d, vcc" % (HD + j, HD + j, HD + j + 1))
    e("v_cndmask_b32 v%d, v%d, 0, vcc" % (HD + NQ - 1, HD + NQ - 1))
    e("ds_read_b64 v[%d:%d], v%d offset:%d" % (n, n + 1, HD, RB))
def check(k, tag):
    e("v_cmp_ne_u32 vcc, 0, v%d" % HD)
    cperm(k)
    e("s_add_u32 s48, s48, 32")
    e("s_cbranch_vccz G_DR%s" % tag)
    e("s_cmp_lt_u32 s48, s49"); e("s_cbranch_scc1 G_NB%s" % tag)
    e("s_mov_b32 s49, s50"); e("s_mov_b32 s50, s51"); e("s_mov_b32 s51, -1")
    if P.get("RP"): prefetch()
    e("s_setprio 2"); e("s_cmp_lg_u32 s50, -1"); e("s_cbranch_scc1 G_NB%s" % tag)
    e("s_setprio 1"); e("s_cmp_lg_u32 s49, -1"); e("s_cbranch_scc1 G_NB%s" % tag)
    e("s_setprio 0")
    e("G_NB%s:" % tag)
assert D % 2 == 0 and D >= 4 and P["BAR"] == 2 and not SYNC
e("s_movk_i32 s62, 0x2000"); e("s_mov_b32 s30, 0x05040100"); e("s_mov_b32 s31, 0x07060302")
for k in range(0, D, 2): chase(k); chase(k + 1); check(k, "P%d" % k)
if P.get("RP") == 1: prefetch()
e("G_LOOP:")
for k in range(0, D, 2):
    e("s_waitcnt vmcnt(%d)" % (2 * (D - 2)))
    perms(k); chase(k); dots(k, 0); chase(k + 1); dots(k, 1); check(k, "L%d" % k)
e("s_sub_u32 s62, s62, 1"); e("s_cbranch_scc0 G_LOOP"); e("s_branch G_DRL%d" % (D - 2))
def drain(ks):
    for n, k in enumerate(ks):
        e("s_waitcnt vmcnt(%d)" % (4 * (len(ks) - 1 - n))); perms(k); dots(k, 0); dots(k, 1)
    e("s_branch G_DONE")
for k in range(0, D - 2, 2):
    e("G_DRP%d:" % k); drain(list(range(0, k + 1, 2)))
e("G_DRP%d:" % (D - 2))
for k in range(D - 2, -1, -2):
    e("G_DRL%d:" % k); drain([(k + 2 + j) % D for j in range(0, D, 2)])
e("G_DONE:"); e("s_nop 2"); e("s_waitcnt lgkmcnt(0)")
if P["BAR"] == 1:
    e("s_cmp_eq_u32 s57, 0"); e("s_cbranch_scc1 G_DN2"); e("s_sub_u32 s57, s57, 1"); e("s_barrier"); e("s_branch G_DONE"); e("G_DN2:")
e("s_cmp_le_u32 s56, s44"); e("s_cbranch_scc1 G_EPI")
e("s_add_u32 s44, s44, 1"); e("s_waitcnt lgkmcnt(0)"); e("s_barrier")
e("s_branch G_ROUND")
e("G_EPI:"); stamp(5)
RBF = 48; HI = 56; DD = 72; G = 88; U = ACC + 16
e("v_lshlrev_b32 v5, 2, v%d" % EV)
e("ds_read_b128 v[%d:%d], v5 offset:%d" % (RBF, RBF + 3, RBL))
for j in range(16): e("v_cvt_pk_bf16_f32 v%d, v%d, v%d" % (HI + j, ACC + 2 * j, ACC + 2 * j + 1))
SW = "quad_perm:[1,0,3,2] row_mask:0xf bank_mask:0xf"
e("s_mov_b32 vcc_lo, 0x55555555"); e("s_mov_b32 vcc_hi, 0x55555555")
for j in range(4): e("v_mov_b32 v%d, 0" % (RBF + 4 + j))
for n, b in enumerate((HI, HI + 8)):
    for j in range(4): e("v_cndmask_b32_dpp v%d, v%d, v%d, vcc %s" % (ACC + 8 * n + j, b + 4 + j, b + j, SW))
e("s_not_b64 vcc, vcc")
for n, b in enumerate((HI, HI + 8)):
    for j in range(4): e("v_cndmask_b32_dpp v%d, v%d, v%d, vcc %s" % (ACC + 8 * n + 4 + j, b + j, b + 4 + j, SW))
HI = ACC
e("s_waitcnt lgkmcnt(0)")
for j in range(4): e("v_permlane32_swap_b32 v%d, v%d" % (RBF + j, RBF + 4 + j))
for b in (HI, HI + 8):
    for j in range(4): e("v_permlane32_swap_b32 v%d, v%d" % (b + j, b + 4 + j))
def mf(d, a, b, c):
    e("v_mfma_f32_32x32x16_bf16 v[%d:%d], v[%d:%d], v[%d:%d], %s" % (d, d + 15, a, a + 3, b, b + 3, c if c == "0" else "v[%d:%d]" % (c, c + 15)))
for h in range(2):
    e("s_nop 1")
    mf(DD, W, HI + 4 * h, "0"); mf(G, W + 8, RBF + 4 * h, "0")
    mf(DD, W + 4, HI + 8 + 4 * h, DD)
    mf(U, W + 16, RBF + 4 * h, "0")
    e("s_nop 11")
    for j in range(4):
        e("v_pk_mul_f32 v[%d:%d], v[%d:%d], v[%d:%d]" % (G + 2 * j, G + 2 * j + 1, G + 2 * j, G + 2 * j + 1, DD + 2 * j, DD + 2 * j + 1))
    for j in range(4):
        e("v_pk_fma_f32 v[%d:%d], v[%d:%d], v[%d:%d], v[%d:%d]" % (G + 2 * j, G + 2 * j + 1, G + 8 + 2 * j, G + 9 + 2 * j, DD + 8 + 2 * j, DD + 9 + 2 * j, G + 2 * j, G + 2 * j + 1))
    for j in range(4): e("v_cvt_pk_bf16_f32 v%d, v%d, v%d" % (DD + j, G + 2 * j, G + 2 * j + 1))
    e("s_nop 1")
    mf(U, W + 12, DD, U)
    for j in range(4):
        m = MM + 4 * h + j
        e("v_lshlrev_b32 v%d, 16, v%d" % (G + 2 * j, m)); e("v_and_b32 v%d, s52, v%d" % (G + 2 * j + 1, m))
    e("s_nop 7")
    for j in range(4):
        e("v_pk_fma_f32 v[%d:%d], v[%d:%d], v[%d:%d], v[%d:%d]" % (G + 2 * j, G + 2 * j + 1, U + 2 * j, U + 2 * j + 1, U + 8 + 2 * j, U + 9 + 2 * j, G + 2 * j, G + 2 * j + 1))
    for j in range(4): e("v_cvt_pk_bf16_f32 v%d, v%d, v%d" % (MM + 4 * h + j, G + 2 * j, G + 2 * j + 1))
    e("buffer_store_dwordx4 v[%d:%d], v%d, s[32:35], s39 offen %s" % (MM + 4 * h, MM + 4 * h + 3, OA + h, P.get("OS", "")))
stamp(6); stamp_out(1, 24, 3, 5)
e("G_EXIT:"); e("s_endpgm")
e('.section .rodata,"a"')
for n, nv in (("part_kernel", 140), ("gath_kernel", NV2)):
    nv = (nv + 3) // 4 * 4
    e(".p2align 6"); e(".amdhsa_kernel %s" % n)
    e("  .amdhsa_next_free_vgpr %d" % nv); e("  .amdhsa_next_free_sgpr 80"); e("  .amdhsa_accum_offset %d" % nv)
    e("  .amdhsa_group_segment_fixed_size 0"); e("  .amdhsa_kernarg_size 112"); e("  .amdhsa_user_sgpr_count 2")
    e("  .amdhsa_user_sgpr_kernarg_segment_ptr 1"); e("  .amdhsa_system_sgpr_workgroup_id_x 1"); e(".end_amdhsa_kernel")
open(sys.argv[1], "w").write("\n".join(out) + "\n")
```

```python
import sys, struct
P = dict(D=4, ORD=1, SYNC=0, NQ=4, PF=1, ST="sc1", LD="nt", PFN=1, XM=1, FM=0, RL="", BAR=2, PRI=0)
for a in sys.argv[2:]:
    k, v = a.split("=")
    P[k] = int(v) if v.lstrip("-").isdigit() else v
out = []
def e(s=""): out.append(s)
NAME = "gather_scatter__molecular_angular_gemnet__graph"
E, T = 160000, 2560000
NCH, CH = 256, 10000
NB, BE = 256, 625
CSTR = 62464
WS_DESC = NCH * CSTR
WS_W = WS_DESC + NCH * 1024
WS_SZ = WS_W + 5 * 1024
MDIV = (2**32 + BE - 1) // BE
assert MDIV < 2**24 and all((o * MDIV) >> 32 == o // BE for o in range(E))
NQ = P["NQ"]
MQ = (2**32 * NQ) // E
assert (E - 1) * MQ >> 32 == NQ - 1 and MQ < 2**24
TRASH = 2560
hdr = open("cdna_kernels/%s.s.ref" % NAME).read().split("; Override")[0]
e(hdr.rstrip())
L1 = max(2064 + CSTR, P.get("L1", 83968))
CAPW = 1280
SCR = 10272
CNT = SCR + 2576; BIN = CNT + 2576; PERM = BIN + 256
RBL = PERM + 2560
RB = RBL
L2 = RB + 16 + 10 * CAPW * 8
e("; @launch kernel=part_kernel grid=(256,1,1) block=(512,1,1) lds=%d" % L1)
e("; @launch kernel=gath_kernel grid=(256,1,1) block=(640,1,1) lds=%d" % L2)
e('.amdgcn_target "amdgcn-amd-amdhsa--gfx950"')
e(".text")
def srd(d, b, size, stride=0):
    e("s_mov_b32 s%d, s%d" % (d, b))
    if stride: e("s_or_b32 s%d, s%d, 0x%x" % (d + 1, b + 1, stride << 16))
    else: e("s_mov_b32 s%d, s%d" % (d + 1, b + 1))
    e("s_mov_b32 s%d, %d" % (d + 2, size))
    e("s_mov_b32 s%d, 0x00020000" % (d + 3))
def scan(v):
    for sh in (1, 2, 4, 8):
        e("s_nop 1")
        e("v_add_u32_dpp v%d, v%d, v%d row_shr:%d row_mask:0xf bank_mask:0xf bound_ctrl:0" % (v, v, v, sh))
    e("s_nop 1")
    e("v_add_u32_dpp v%d, v%d, v%d row_bcast:15 row_mask:0xa bank_mask:0xf" % (v, v, v))
    e("s_nop 1")
    e("v_add_u32_dpp v%d, v%d, v%d row_bcast:31 row_mask:0xc bank_mask:0xf" % (v, v, v))
WS_ST = 64 << 20
def stamp(i):
    if P.get("STAMP"):
        e("s_waitcnt lgkmcnt(0)"); e("s_memrealtime s[%d:%d]" % (64 + 2 * i, 65 + 2 * i)); e("s_waitcnt lgkmcnt(0)")
def stamp_out(k, srd0, wreg, sh):
    if P.get("STAMP"):
        e("s_waitcnt vmcnt(0)"); stamp(7)
        for i in range(8): e("v_mov_b32 v%d, s%d" % (8 + i, 64 + 2 * i))
        e("s_lshl_b32 s63, s2, 9"); e("s_lshl_b32 s62, s%d, %d" % (wreg, sh)) if sh >= 0 else e("s_lshr_b32 s62, s%d, %d" % (wreg, -sh))
        e("s_add_u32 s63, s63, s62"); e("s_add_u32 s63, s63, %d" % (WS_ST + k * (1 << 20)))
        e("s_mov_b32 s%d, 0x8000000" % (srd0 + 2)); e("v_mov_b32 v7, 0"); e("s_mov_b64 exec, 1")
        e("buffer_store_dwordx4 v[8:11], v7, s[%d:%d], s63 offen" % (srd0, srd0 + 3))
        e("buffer_store_dwordx4 v[12:15], v7, s[%d:%d], s63 offen offset:16" % (srd0, srd0 + 3))
def kstart(n):
    e(".globl %s" % n); e(".p2align 8"); e(".type %s,@function" % n); e("%s:" % n)

HIST, BASE, STG = 0, 1024, 2064
BCAP, BSTR = 84, 528
kstart("part_kernel")
e("s_cmp_ge_u32 s2, %d" % NCH); e("s_cbranch_scc1 P_EXIT")
stamp(0)
e("s_load_dwordx4 s[4:7], s[0:1], 8")
e("s_load_dwordx2 s[8:9], s[0:1], 32")
e("s_load_dwordx2 s[10:11], s[0:1], 104")
e("s_load_dwordx8 s[40:47], s[0:1], 56")
e("v_lshlrev_b32 v1, 4, v0"); e("v_lshlrev_b32 v2, 3, v0"); e("v_lshlrev_b32 v3, 2, v0")
e("v_mov_b32 v4, 0"); e("v_mov_b32 v5, 1")
e("v_readfirstlane_b32 s35, v0")
e("ds_write_b32 v3, v4")
e("v_cmp_gt_u32 vcc, %d, v0" % (CH // 4 - 2048))
e("s_mul_i32 s28, s2, %d" % (CH * 4)); e("s_mul_i32 s29, s2, %d" % (CH * 2))
e("s_mov_b64 s[36:37], vcc")
e("s_waitcnt lgkmcnt(0)")
srd(12, 4, T * 4); srd(16, 6, T * 4); srd(20, 8, T * 2); srd(24, 10, WS_SZ)
PT = 128
e("v_mov_b32 v%d, 0" % (PT + 8))
e("s_cmp_lg_u32 s35, 448"); e("s_cbranch_scc1 P_NOPREP"); e("s_cmp_ge_u32 s2, 5"); e("s_cbranch_scc1 P_NOPREP")
e("v_and_b32 v8, 3, v0"); e("v_bfe_u32 v9, v0, 2, 1"); e("v_lshl_add_u32 v8, v9, 3, v8")
e("v_bfe_u32 v9, v0, 3, 1"); e("v_lshl_add_u32 v8, v9, 2, v8"); e("v_lshlrev_b32 v8, 1, v8")
e("v_bfe_u32 v9, v0, 4, 1"); e("v_bfe_u32 v13, v0, 5, 1")
e("v_xor_b32 v14, 1, v9")
e("v_lshl_add_u32 v15, v13, 8, v8")
e("v_lshl_add_u32 v10, v9, 20, v15")
e("v_lshl_add_u32 v11, v14, 20, v15")
e("v_lshl_add_u32 v12, v9, 5, v8"); e("v_lshl_add_u32 v12, v13, 20, v12")
imgs = [(10, 44, 512, 32), (11, 44, 512, 32), (12, 42, 512, 64), (10, 46, 512, 32), (11, 40, 256, 32)]
for n, (va, sp, sz, st) in enumerate(imgs):
    if n < 4: e("s_cmp_lg_u32 s2, %d" % n); e("s_cbranch_scc1 P_IM%d" % (n + 1))
    srd(48, sp, sz)
    for j in range(8): e("buffer_load_ushort v%d, v%d, s[48:51], 0 offen offset:%d" % (PT + j, va, j * st))
    if n < 4: e("s_branch P_NOPREP"); e("P_IM%d:" % (n + 1))
e("P_NOPREP:")
VO, VI, VA, VR = 8, 28, 48, 60
VB = 80
LD = P["LD"].replace("+"," "); P["ST"] = P["ST"].replace("+"," ")
def tail(g, on):
    if g == 4: e("s_mov_b64 exec, %s" % ("s[36:37]" if on else "-1"))
def ldo(g):
    tail(g, 1); e("s_add_u32 s30, s28, %d" % (g * 8192))
    e("buffer_load_dwordx4 v[%d:%d], v1, s[16:19], s30 offen %s" % (VO + 4 * g, VO + 4 * g + 3, LD)); tail(g, 0)
def ldai(g):
    tail(g, 1); e("s_add_u32 s30, s29, %d" % (g * 4096))
    e("buffer_load_dwordx2 v[%d:%d], v2, s[20:23], s30 offen %s" % (VA + 2 * g, VA + 2 * g + 1, LD))
    e("s_add_u32 s30, s28, %d" % (g * 8192))
    e("buffer_load_dwordx4 v[%d:%d], v1, s[12:15], s30 offen %s" % (VI + 4 * g, VI + 4 * g + 3, LD)); tail(g, 0)
seq = {0: "o0 o1 a0 o2 a1 o3 a2 o4 a3 a4", 1: "o0 o1 o2 a0 o3 a1 o4 a2 a3 a4", 2: "o0 o1 o2 o3 o4 a0 a1 a2 a3 a4"}[P.get("SEQ", 2)].split()
LA = P.get("LA", 5)
pos = {}; nld = 0
def issue(upto):
    global nld
    for x in seq[:upto]:
        if x not in pos: (ldo if x[0] == "o" else ldai)(int(x[1])); nld += 1 if x[0] == "o" else 2; pos[x] = nld
issue(LA)
e("s_mov_b32 s31, %d" % MDIV); e("s_mov_b32 s32, %d" % MQ); e("s_mov_b32 s33, %d" % -BE); e("s_movk_i32 s34, %d" % (BSTR // 4))
e("s_movk_i32 s39, %d" % BCAP)
e("s_barrier")
def put(i, j, a):
    t = 120 + 2 * j
    e("v_and_b32 v7, 2, v6"); e("v_add_u32 v%d, v7, v6" % t); e("v_mad_i32_i24 v%d, v7, -2, v6" % (t + 1))
    e("ds_write_b32 v%d, v%d offset:%d" % (t, VI + i, STG))
    e("ds_write_b16%s v%d, v%d offset:%d" % (("", "_d16_hi")[j % 2], t + 1, a, STG + 4))
for g in range(5):
    e("s_waitcnt vmcnt(%d)" % (nld - pos["o%d" % g])); issue(LA + g + 1); tail(g, 1)
    for j in range(4):
        i = 4 * g + j
        e("v_mul_hi_u32_u24 v%d, s31, v%d" % (VB + i, VO + i))
        e("v_lshlrev_b32 v%d, 2, v%d" % (VB + i, VB + i))
        e("ds_add_rtn_u32 v%d, v%d, v5" % (VR + i, VB + i))
    tail(g, 0)
assert nld == 15
e("v_and_b32 v6, 63, v0"); e("v_lshlrev_b32 v6, 4, v6")
e("s_waitcnt lgkmcnt(0)"); e("s_barrier")
stamp(1)
e("ds_read_b128 v[100:103], v6")
e("s_waitcnt lgkmcnt(0)")
for j in range(4):
    e("v_add_u32 v%d, 1, v%d" % (104 + j, 100 + j)); e("v_lshrrev_b32 v%d, 1, v%d" % (104 + j, 104 + j))
e("v_add_u32 v109, v104, v105"); e("v_add_u32 v110, v109, v106"); e("v_add_u32 v7, v110, v107")
e("v_mov_b32 v111, v7")
scan(7)
e("v_sub_u32 v108, v7, v111")
e("v_add_u32 v111, v108, v110"); e("v_add_u32 v110, v108, v109"); e("v_add_u32 v109, v108, v104")
for j in range(4): e("v_mul_u32_u24 v%d, 12, v%d" % (112 + j, 108 + j))
e("ds_write_b128 v6, v[112:115] offset:%d" % BASE)
e("s_cmp_lg_u32 s35, 0"); e("s_cbranch_scc1 P_NOTW0")
for j in range(4): e("v_lshrrev_b32 v7, 2, v%d" % (112 + j)); e("v_lshl_or_b32 v%d, v%d, 16, v7" % (PT + j, 104 + j))
e("s_lshl_b32 s30, s2, 10"); e("s_add_u32 s30, s30, %d" % WS_DESC)
e("buffer_store_dwordx4 v[%d:%d], v6, s[24:27], s30 offen" % (PT, PT + 3))
e("v_mov_b32 v120, %d" % TRASH); e("v_mov_b32 v121, -14")
for j in range(4):
    e("v_and_b32 v122, 1, v%d" % (100 + j)); e("v_cmp_eq_u32 vcc, 1, v122")
    e("v_mad_u32_u24 v122, v%d, 6, v%d" % (100 + j, 112 + j)); e("s_nop 0")
    e("v_cndmask_b32 v122, v121, v122, vcc"); e("v_add_u32 v122, %d, v122" % (STG + 2))
    e("ds_write_b32 v122, v120")
e("P_NOTW0:")
stamp(2)
for g in range(5):
    tail(g, 1)
    for j in range(4): e("ds_read_b32 v%d, v%d offset:%d" % (100 + 4 * g + j, VB + 4 * g + j, BASE))
    tail(g, 0)
for g in range(5):
    e("s_waitcnt vmcnt(%d)" % (nld - pos["a%d" % g])); tail(g, 1)
    for j in range(4):
        i = 4 * g + j
        e("v_mul_hi_u32_u24 v6, s32, v%d" % (VI + i))
        e("v_lshl_add_u32 v6, v%d, 2, v6" % (VO + i))
        e("v_mad_i32_i24 v6, v%d, s33, v6" % (VB + i))
        e("v_lshl_add_u32 v%d, v%d, 14, v6" % (VI + i, VI + i))
        if g == 0 and j == 0: e("s_waitcnt lgkmcnt(0)")
        e("v_mad_u32_u24 v6, v%d, 6, v%d" % (VR + i, 100 + i)); put(i, j, VA + 2 * g + j // 2)
    tail(g, 0)
e("s_mul_i32 s28, s2, %d" % CSTR)
e("s_waitcnt lgkmcnt(0)"); e("s_barrier")
stamp(3)
for g in range(7):
    e("ds_read_b128 v[%d:%d], v1 offset:%d" % (8 + 4 * g, 11 + 4 * g, STG + g * 8192))
for g in range(7):
    e("s_add_u32 s30, s28, %d" % (g * 8192))
    e("s_waitcnt lgkmcnt(%d)" % (6 - g))
    e("buffer_store_dwordx4 v[%d:%d], v1, s[24:27], s30 offen %s" % (8 + 4 * g, 11 + 4 * g, P["ST"]))
stamp(4)
e("s_cmp_ge_u32 s35, %d" % ((CSTR - 7 * 8192) // 16)); e("s_cbranch_scc1 P_PR2")
e("ds_read_b128 v[48:51], v1 offset:%d" % (STG + 7 * 8192))
e("s_add_u32 s30, s28, %d" % (7 * 8192))
e("s_waitcnt lgkmcnt(0)")
e("buffer_store_dwordx4 v[48:51], v1, s[24:27], s30 offen %s" % P["ST"])
e("P_PR2:")
e("s_cmp_lg_u32 s35, 448"); e("s_cbranch_scc1 P_FIN"); e("s_cmp_ge_u32 s2, 5"); e("s_cbranch_scc1 P_FIN")
for j in range(4): e("v_lshl_or_b32 v%d, v%d, 16, v%d" % (PT + 8 + j, PT + 1 + 2 * j, PT + 2 * j))
e("s_lshl_b32 s30, s2, 10"); e("s_add_u32 s30, s30, %d" % (WS_W - 448 * 16))
e("buffer_store_dwordx4 v[%d:%d], v1, s[24:27], s30 offen" % (PT + 8, PT + 11))
e("P_FIN:"); stamp_out(0, 24, 35, -1)
e("P_EXIT:"); e("s_endpgm")

D = P["D"]
ACC = 16; ROW = 48; CW = ROW + 8 * D; REC = CW + D; HD = REC + 2 * D
UN = HD + 4
LNK = 48
PFV = max(UN + 16, 118); EV = PFV + 1; W = EV + 1; MM = W + 20; OA = MM + 8; RBV = OA + 2; NV2 = RBV + 8
MORE = 10256
kstart("gath_kernel")
e("s_cmp_ge_u32 s2, %d" % NB); e("s_cbranch_scc1 G_EXIT")
stamp(0)
e("s_lshr_b32 s63, s2, 3")
if P["XM"]:
    e("s_and_b32 s4, s2, 7"); e("s_lshl_b32 s4, s4, 5"); e("s_add_u32 s2, s4, s63")
e("s_mul_i32 s63, s63, %d" % (((E * 32 // 128 // P.get("PFQ", NQ) + 31) // 32) * 128))
e("s_load_dwordx2 s[4:5], s[0:1], 0")
e("s_load_dwordx2 s[6:7], s[0:1], 24")
e("s_load_dwordx2 s[8:9], s[0:1], 88")
e("s_load_dwordx2 s[10:11], s[0:1], 104")
e("s_load_dwordx2 s[36:37], s[0:1], 40")
e("v_lshrrev_b32 v2, 6, v0"); e("v_and_b32 v4, 63, v0")
e("v_readfirstlane_b32 s3, v2")
e("v_lshlrev_b32 v1, 4, v4")
e("v_min_u32 v3, 6, v2"); e("v_mad_u32_u24 v2, v2, 25, v3"); e("v_add_u32 v2, v2, v4")
e("v_lshlrev_b32 v5, 10, v2"); e("v_mov_b32 v3, 0"); e("v_mov_b32 v15, 1")
e("s_lshl_b32 s30, s2, 2"); e("s_add_u32 s30, s30, %d" % WS_DESC)
e("s_waitcnt lgkmcnt(0)")
srd(24, 10, WS_SZ)
e("s_cmp_lt_u32 s3, 6"); e("s_mov_b32 s38, 0x1ffffff"); e("s_cselect_b32 exec_lo, 0x3ffffff, s38"); e("s_mov_b32 exec_hi, 0")
e("buffer_load_dword v3, v5, s[24:27], s30 offen")
e("s_mov_b64 exec, -1")
srd(16, 4, E * 32); srd(20, 6, E * 2); srd(32, 8, E * 32)
PFQ = P.get("PFQ", NQ)
PFL = (E * 32 // 128 // PFQ + 31) // 32
def prefetch():
    e("buffer_load_dword v12, v%d, s[16:19], 0 offen" % PFV)
    e("v_add_u32 v%d, %d, v%d" % (PFV, PFL * 32 * 128, PFV))
e("v_subrev_u32 v7, %d, v0" % P.get("PFW", 256)); e("v_cmp_gt_u32 vcc, %d, v7" % PFL)
e("v_lshl_add_u32 v7, v7, 7, s63"); e("v_bfrev_b32 v%d, 1" % PFV); e("v_cndmask_b32 v%d, v%d, v7, vcc" % (PFV, PFV))
PF0 = P.get("PF0", 0)
def clears():
    e("v_lshlrev_b32 v5, 4, v0")
    for i in range(4): e("v_mov_b32 v%d, 0" % (8 + i))
    e("ds_write_b32 v13, v8")
    e("ds_write_b128 v5, v[8:11]")
    e("v_lshlrev_b32 v5, 2, v0"); e("ds_write_b32 v5, v8 offset:%d" % CNT); e("ds_write_b32 v5, v8 offset:%d" % (BIN - 16))
e("s_lshl_b32 s45, s3, 8"); e("s_add_u32 s45, s45, %d" % SCR)
e("v_lshl_add_u32 v13, v4, 2, s45")
clears()
e("v_mov_b32 v5, 0xffffc000"); e("v_mov_b32 v6, %d" % RB)
e("ds_write2_b32 v6, v5, v8 offset0:0 offset1:1")
e("v_mov_b32 v6, %d" % MORE); e("ds_write_b32 v6, v8")
e("s_waitcnt lgkmcnt(0)"); e("s_barrier")
e("s_load_dwordx4 s[40:43], s[36:37], 0")
for _ in range(PF0): prefetch()
e("s_mov_b32 s31, %d" % WS_W)
for n in range(5):
    e("buffer_load_dwordx4 v[%d:%d], v1, s[24:27], s31 offen offset:%d" % (W + 4 * n, W + 4 * n + 3, 1024 * n if n < 4 else 0))
    if n == 3: e("s_add_u32 s31, s31, 4096")
e("v_mul_u32_u24 v2, %d, v2" % CSTR)
for i in range(32): e("v_mov_b32 v%d, 0" % (ACC + i))
e("s_mov_b32 s44, 0")
e("v_mov_b32 v%d, 0" % EV); e("v_mov_b32 v%d, 0" % OA); e("v_mov_b32 v%d, 0" % (OA + 1)); e("s_mul_i32 s39, s2, %d" % (BE * 32))
e("s_mov_b32 s52, 0xffff0000"); e("s_movk_i32 s53, 0x3fff"); e("s_mov_b32 s54, 0x1fff8")
e("s_mul_i32 s55, s3, %d" % (CAPW * 8)); e("s_add_u32 s55, s55, %d" % (RB + 16))
e("v_and_b32 v14, 1, v4"); e("v_lshlrev_b32 v14, 4, v14")
e("s_waitcnt vmcnt(%d)" % (5 + PF0))
e("v_and_b32 v5, 0xffff, v3"); e("v_lshl_add_u32 v2, v5, 2, v2"); e("v_lshrrev_b32 v3, 16, v3")
stamp(1)
e("G_ROUND:")
e("v_mov_b32 v7, v3")
for sh in (1, 2, 4, 8):
    e("s_nop 1"); e("v_add_u32_dpp v7, v7, v7 row_shr:%d row_mask:0xf bank_mask:0xf bound_ctrl:0" % sh)
e("s_nop 1"); e("v_add_u32_dpp v7, v7, v7 row_bcast:15 row_mask:0xa bank_mask:0xf")
e("v_sub_u32 v6, v7, v3")
e("v_min_u32 v7, %d, v7" % (CAPW // 2)); e("v_min_u32 v6, %d, v6" % (CAPW // 2))
e("v_sub_u32 v8, v7, v6")
e("v_readlane_b32 s49, v7, 31")
e("v_cmp_lt_u32 vcc, 0, v8")
e("v_mul_u32_u24 v9, 12, v6"); e("v_sub_u32 v9, v2, v9")
e("v_mbcnt_lo_u32_b32 v10, vcc_lo, 0"); e("v_lshl_add_u32 v10, v10, 2, s45")
e("v_subrev_u32 v6, 1, v6")
e("v_lshlrev_b32 v11, v6, v15")
e("v_ashrrev_i32 v6, 5, v6"); e("v_lshl_add_u32 v6, v6, 2, s45")
e("s_mov_b64 exec, vcc")
e("ds_write_b32 v10, v9 offset:128")
e("ds_or_b32 v6, v11 offset:4")
e("s_mov_b64 exec, -1")
e("ds_read_b32 v6, v13 offset:4")
e("v_mad_u32_u24 v2, v8, 12, v2"); e("v_sub_u32 v3, v3, v8")
e("v_cmp_lt_u32 vcc, 0, v3")
e("s_add_u32 s50, s49, 63"); e("s_lshr_b32 s50, s50, 6")
e("s_mov_b32 s46, vcc_lo")
e("s_sub_u32 s51, 0, s49"); e("s_and_b32 s51, s51, 63"); e("s_lshr_b64 s[58:59], -1, s51")
e("s_lshr_b32 s47, s45, 2"); e("s_add_u32 s47, s47, 32")
e("s_waitcnt lgkmcnt(0)")
AD = 88; XR = 98
for i in range(10):
    e("v_readlane_b32 s60, v6, %d" % (2 * i)); e("v_readlane_b32 s61, v6, %d" % (2 * i + 1))
    e("v_mov_b32 v7, s47"); e("s_nop 0")
    e("v_mbcnt_lo_u32_b32 v7, s60, v7"); e("v_mbcnt_hi_u32_b32 v7, s61, v7")
    e("s_bcnt1_i32_b64 s48, s[60:61]"); e("v_lshlrev_b32 v7, 2, v7"); e("s_add_u32 s47, s47, s48")
    e("ds_read_b32 v%d, v7" % (AD + i))
e("s_mov_b32 s48, 0")
for i in range(10):
    e("s_waitcnt lgkmcnt(%d)" % (9 - i))
    e("v_mad_u32_u24 v%d, v4, 12, v%d" % (AD + i, AD + i))
    if i == 5: e("s_add_u32 s48, s48, %d" % (5 * 768))
    e("s_cmp_gt_u32 s50, %d" % i); e("s_cselect_b64 exec, -1, 1")
    e("buffer_load_dwordx3 v[%d:%d], v%d, s[24:27], s48 offen offset:%d %s" % (LNK + 4 * i, LNK + 4 * i + 2, AD + i, (i % 5) * 768, P["RL"].replace("+", " ")))
e("s_mov_b64 exec, -1")
e("G_F3:")
NAFT = 0
stamp(2)
if P.get("B1"): e("s_barrier")
e("s_cmp_eq_u32 s46, 0"); e("s_cbranch_scc1 G_NOMORE")
e("s_add_u32 s30, s44, 1"); e("v_mov_b32 v5, s30"); e("v_mov_b32 v6, %d" % MORE); e("ds_max_u32 v6, v5")
e("G_NOMORE:")
e("v_add_u32 v5, s55, v1")
e("v_subrev_u32 v6, %d, v5" % RB); e("v_lshrrev_b32 v6, 3, v6")
e("s_mov_b32 s30, 0x3e22f983"); e("s_mov_b32 s31, s30"); e("s_mov_b32 s60, -1.0"); e("s_mov_b32 s61, -1.0")
def lwrite(i):
    r = LNK + 4 * i
    e("v_bfi_b32 v%d, s53, v%d, v%d" % (r, XR + 2 * i, r)); e("v_bfi_b32 v%d, s53, v%d, v%d" % (r + 2, XR + 2 * i + 1, r + 2))
    e("ds_write_b128 v5, v[%d:%d] offset:%d" % (r, r + 3, 1024 * i))
for i in range(10):
    r = LNK + 4 * i
    e("s_cmp_le_u32 s50, %d" % i); e("s_cbranch_scc1 G_LE%d" % i)
    e("s_cmp_eq_u32 s50, %d" % (i + 1)); e("s_cselect_b64 exec, s[58:59], -1")
    e("s_waitcnt vmcnt(%d)" % (9 - i))
    e("v_and_b32 v8, s53, v%d" % r); e("v_and_b32 v9, s53, v%d" % (r + 2))
    e("v_and_b32 v10, -4, v8"); e("v_and_b32 v11, -4, v9")
    e("v_lshlrev_b32 v8, 2, v8"); e("v_lshlrev_b32 v9, 2, v9"); e("v_add_u32 v7, 1, v6")
    e("ds_wrxchg_rtn_b32 v%d, v8, v6" % (XR + 2 * i)); e("ds_wrxchg_rtn_b32 v%d, v9, v7" % (XR + 2 * i + 1))
    e("ds_add_u32 v10, v15 offset:%d" % CNT); e("ds_add_u32 v11, v15 offset:%d" % CNT)
    e("s_mov_b64 exec, -1")
    e("v_lshlrev_b32 v8, 16, v%d" % (r + 1)); e("v_and_b32 v9, s52, v%d" % (r + 1))
    e("v_pk_mul_f32 v[8:9], v[8:9], s[30:31]")
    e("v_cos_f32 v8, v8"); e("v_cos_f32 v9, v9")
    e("v_add_u32 v6, 128, v6")
    e("v_pk_add_f32 v[10:11], v[8:9], v[8:9]")
    e("v_pk_fma_f32 v[10:11], v[10:11], v[8:9], s[60:61]")
    e("v_cvt_pk_bf16_f32 v%d, v8, v10" % (r + 1)); e("v_cvt_pk_bf16_f32 v%d, v9, v11" % (r + 3))
    if i: e("s_waitcnt lgkmcnt(4)"); lwrite(i - 1)
for i in range(10, 0, -1):
    e("G_LE%d:" % i); e("s_waitcnt lgkmcnt(0)"); lwrite(i - 1)
    if i > 1: e("s_branch G_LE0")
e("G_LE0:")
if P.get("PFA") or P.get("W0"): e("s_waitcnt vmcnt(0)")
if not P.get("PFA"):
    for _ in range(P["PF"]): prefetch()
e("s_setprio 3")
stamp(3)
e("v_lshlrev_b32 v5, 2, v0")
e("s_waitcnt lgkmcnt(0)"); e("s_barrier")
if not (P.get("PFA") or P.get("W0")): e("s_waitcnt vmcnt(%d)" % P["PF"])
if P.get("PFA"):
    for _ in range(P["PF"]): prefetch()
e("s_cmp_lg_u32 s44, 0"); e("s_cbranch_scc1 G_SORTED")
e("ds_read_b32 v6, v5 offset:%d" % CNT)
e("s_waitcnt lgkmcnt(0)")
e("v_min_u32 v6, 63, v6"); e("v_lshlrev_b32 v6, 2, v6")
e("ds_add_rtn_u32 v7, v6, v15 offset:%d" % BIN)
e("v_lshlrev_b32 v8, 2, v4")
e("s_waitcnt lgkmcnt(0)"); e("s_barrier")
e("ds_read_b32 v9, v8 offset:%d" % BIN)
e("s_waitcnt lgkmcnt(0)")
e("v_mov_b32 v10, v9")
scan(10)
e("v_sub_u32 v10, v10, v9")
e("ds_bpermute_b32 v10, v6, v10")
MAP = str(P.get("MAP", "m6498325701"))[1:][::-1]
assert sorted(MAP) == list("0123456789")
e("s_mov_b32 s60, 0x%s" % MAP[2:]); e("s_movk_i32 s61, 0x%s" % MAP[:2]); e("s_lshl_b32 s48, s3, 2"); e("s_lshr_b64 s[60:61], s[60:61], s48")
e("s_and_b32 s60, s60, 15")
if P["PRI"]:
    th = {1: (4, 7, 9), 2: (7, 8, 9), 3: (4, 8, 99), 4: (2, 5, 8), 5: (8, 99, 99)}[P["PRI"]]
    for n, t in enumerate(th):
        e("s_cmp_lt_u32 s%d, %d" % (60 if P["PRI"] < 3 else 3, t)); e("s_cbranch_scc1 G_PR"); e("s_setprio %d" % (n + 1))
    e("G_PR:")
e("s_lshl_b32 s60, s60, 8")
e("s_waitcnt lgkmcnt(0)")
e("v_add_lshl_u32 v10, v10, v7, 2")
e("ds_write_b32 v10, v5 offset:%d" % PERM)
e("v_add_u32 v8, s60, v8")
e("s_waitcnt lgkmcnt(0)"); e("s_barrier")
e("ds_read_b32 v%d, v8 offset:%d" % (EV, PERM))
e("s_waitcnt lgkmcnt(0)")
e("v_cmp_gt_u32 vcc, %d, v%d" % (BE * 4, EV)); e("v_lshlrev_b32 v%d, 3, v%d" % (OA, EV)); e("v_bfrev_b32 v8, 1")
e("v_cndmask_b32 v%d, v8, v%d, vcc" % (OA, OA)); e("v_add_u32 v%d, 16, v%d" % (OA + 1, OA))
e("v_lshrrev_b32 v8, 4, v%d" % OA); e("s_mul_i32 s31, s2, %d" % (BE * 2))
e("buffer_load_ushort v%d, v8, s[20:23], s31 offen" % (RBV + 3))
e("v_permlane32_swap_b32 v%d, v%d" % (OA, OA + 1))
for h in range(2): e("buffer_load_dwordx4 v[%d:%d], v%d, s[16:19], s39 offen" % (MM + 4 * h, MM + 4 * h + 3, OA + h))
e("G_SORTED:")
e("v_lshlrev_b32 v5, 2, v%d" % EV); e("v_mov_b32 v6, %d" % MORE)
e("ds_read_b128 v[%d:%d], v5" % (HD, HD + 3)); e("ds_read_b32 v6, v6"); e("ds_read_b32 v7, v%d offset:%d" % (EV, CNT))
e("s_waitcnt lgkmcnt(0)")
e("v_readlane_b32 s47, v7, 63")
e("s_mov_b32 s57, %d" % (NQ - 1)); e("s_mov_b32 s48, 0")
if P["BAR"] == 2:
    for n, t in enumerate(str(P.get("TH", "t48c"))[1:]): e("s_mul_i32 s%d, s47, %d" % (49 + n, int(t, 16)))
e("v_readfirstlane_b32 s56, v6"); stamp(4)
for i in range(4): e("v_lshlrev_b32 v%d, 3, v%d" % (HD + i, HD + i))
SYNC = P["SYNC"]
if not SYNC:
    for k in range(NQ - 2, -1, -1):
        e("v_cmp_eq_u32 vcc, 0, v%d" % (HD + k)); e("s_nop 1")
        for j in range(k, NQ - 1): e("v_cndmask_b32 v%d, v%d, v%d, vcc" % (HD + j, HD + j, HD + j + 1))
        e("v_cndmask_b32 v%d, v%d, 0, vcc" % (HD + NQ - 1, HD + NQ - 1))
else:
    e("s_mov_b32 s57, %d" % (NQ - 1))
e("ds_read_b64 v[%d:%d], v%d offset:%d" % (REC, REC + 1, HD, RB))
QP = ["quad_perm:[0,0,2,2] row_mask:0xf bank_mask:0xf", "quad_perm:[1,1,3,3] row_mask:0xf bank_mask:0xf"]
def perms(k):
    for j in range(8):
        r = ROW + 8 * k + j
        e("v_perm_b32 v%d, v%d, v%d, s30" % (UN + 2 * j, r + 8, r)); e("v_perm_b32 v%d, v%d, v%d, s31" % (UN + 2 * j + 1, r + 8, r))
def dots(k, h):
    if P["FM"] == 2: return
    for l in range(2):
        for f in range(8): e("v_dot2c_f32_bf16_dpp v%d, v%d, v%d %s" % (ACC + 16 * l + 8 * h + f, CW + k + l, UN + 8 * h + f, QP[h]))
def cperm(k):
    for l in range(2): e("v_perm_b32 v%d, v%d, v%d, s%d" % (CW + k + l, REC + 2 * k + 3, REC + 2 * k + 1, 30 + l))
def chase(k):
    r = REC + 2 * k; n = REC + 2 * ((k + 1) % D)
    e("s_waitcnt lgkmcnt(0)")
    e("v_lshrrev_b32 v5, 9, v%d" % r); e("v_and_b32 v5, %s, v5" % (P["HACK"] * 32 if P.get("HACK") else "-32"))
    e("v_lshlrev_b32 v%d, 3, v%d" % (HD, r)); e("v_and_b32 v%d, s54, v%d" % (HD, HD))
    e("v_add_u32_dpp v6, v5, v14 " + QP[0]); e("v_add_u32_dpp v7, v5, v14 " + QP[1])
    e("v_cmp_eq_u32 vcc, 0, v%d" % HD)
    e("buffer_load_dwordx4 v[%d:%d], v6, s[16:19], 0 offen" % (ROW + 8 * k, ROW + 8 * k + 3))
    e("buffer_load_dwordx4 v[%d:%d], v7, s[16:19], 0 offen" % (ROW + 8 * k + 4, ROW + 8 * k + 7))
    for j in range(NQ - 1): e("v_cndmask_b32 v%d, v%d, v%d, vcc" % (HD + j, HD + j, HD + j + 1))
    e("v_cndmask_b32 v%d, v%d, 0, vcc" % (HD + NQ - 1, HD + NQ - 1))
    e("ds_read_b64 v[%d:%d], v%d offset:%d" % (n, n + 1, HD, RB))
def check(k, tag):
    e("v_cmp_ne_u32 vcc, 0, v%d" % HD)
    cperm(k)
    e("s_add_u32 s48, s48, 32")
    e("s_cbranch_vccz G_DR%s" % tag)
    e("s_cmp_lt_u32 s48, s49"); e("s_cbranch_scc1 G_NB%s" % tag)
    e("s_mov_b32 s49, s50"); e("s_mov_b32 s50, s51"); e("s_mov_b32 s51, -1")
    if P.get("RP"): prefetch()
    e("s_setprio 2"); e("s_cmp_lg_u32 s50, -1"); e("s_cbranch_scc1 G_NB%s" % tag)
    e("s_setprio 1"); e("s_cmp_lg_u32 s49, -1"); e("s_cbranch_scc1 G_NB%s" % tag)
    e("s_setprio 0")
    e("G_NB%s:" % tag)
assert D % 2 == 0 and D >= 4 and P["BAR"] == 2 and not SYNC
e("s_movk_i32 s62, 0x2000"); e("s_mov_b32 s30, 0x05040100"); e("s_mov_b32 s31, 0x07060302")
def rbf():
    e("s_cmp_lg_u32 s44, 0"); e("s_cbranch_scc1 G_NORBF")
    e("s_mov_b32 s58, 0xc1200000"); e("s_mov_b32 s59, 0x3fb8aa3b")
    e("s_waitcnt vmcnt(6)")
    e("v_lshlrev_b32 v10, 16, v%d" % (RBV + 3))
    for j in range(4):
        e("s_lshl_b32 s60, s%d, 16" % (40 + j)); e("s_and_b32 s61, s%d, 0xffff0000" % (40 + j))
        e("v_subrev_f32 v8, s60, v10"); e("v_subrev_f32 v9, s61, v10")
        def rnd():
            e("v_cvt_pk_bf16_f32 v9, v8, v9"); e("v_lshlrev_b32 v8, 16, v9"); e("v_and_b32 v9, s52, v9")
        rnd(); e("v_mul_f32 v8, v8, v8"); e("v_mul_f32 v9, v9, v9")
        rnd(); e("v_mul_f32 v8, s58, v8"); e("v_mul_f32 v9, s58, v9")
        rnd(); e("v_mul_f32 v8, s59, v8"); e("v_mul_f32 v9, s59, v9")
        e("v_exp_f32 v8, v8"); e("v_exp_f32 v9, v9"); e("v_mov_b32 v%d, 0" % (RBV + 4 + j))
        e("v_cvt_pk_bf16_f32 v%d, v8, v9" % (RBV + j))
    e("s_nop 1")
    for j in range(4): e("v_permlane32_swap_b32 v%d, v%d" % (RBV + j, RBV + 4 + j))
    e("G_NORBF:")
for k in range(0, D, 2):
    chase(k); chase(k + 1)
    if k == 0: rbf()
    check(k, "P%d" % k)
if P.get("RP") == 1: prefetch()
e("G_LOOP:")
for k in range(0, D, 2):
    e("s_waitcnt vmcnt(%d)" % (2 * (D - 2)))
    perms(k); chase(k); dots(k, 0); chase(k + 1); dots(k, 1); check(k, "L%d" % k)
e("s_sub_u32 s62, s62, 1"); e("s_cbranch_scc0 G_LOOP"); e("s_branch G_DRL%d" % (D - 2))
def drain(ks):
    for n, k in enumerate(ks):
        e("s_waitcnt vmcnt(%d)" % (4 * (len(ks) - 1 - n))); perms(k); dots(k, 0); dots(k, 1)
    e("s_branch G_DONE")
for k in range(0, D - 2, 2):
    e("G_DRP%d:" % k); drain(list(range(0, k + 1, 2)))
e("G_DRP%d:" % (D - 2))
for k in range(D - 2, -1, -2):
    e("G_DRL%d:" % k); drain([(k + 2 + j) % D for j in range(0, D, 2)])
e("G_DONE:"); e("s_nop 2"); e("s_waitcnt lgkmcnt(0)")
if P["BAR"] == 1:
    e("s_cmp_eq_u32 s57, 0"); e("s_cbranch_scc1 G_DN2"); e("s_sub_u32 s57, s57, 1"); e("s_barrier"); e("s_branch G_DONE"); e("G_DN2:")
e("s_cmp_le_u32 s56, s44"); e("s_cbranch_scc1 G_EPI")
e("s_add_u32 s44, s44, 1"); e("s_waitcnt lgkmcnt(0)"); e("s_barrier")
clears(); e("s_waitcnt lgkmcnt(0)"); e("s_barrier")
e("s_branch G_ROUND")
e("G_EPI:"); stamp(5)
RBF = RBV; HI = 56; DD = 72; G = 88; U = ACC + 16
for j in range(16): e("v_cvt_pk_bf16_f32 v%d, v%d, v%d" % (HI + j, ACC + 2 * j, ACC + 2 * j + 1))
SW = "quad_perm:[1,0,3,2] row_mask:0xf bank_mask:0xf"
e("s_mov_b32 vcc_lo, 0x55555555"); e("s_mov_b32 vcc_hi, 0x55555555")
for n, b in enumerate((HI, HI + 8)):
    for j in range(4): e("v_cndmask_b32_dpp v%d, v%d, v%d, vcc %s" % (ACC + 8 * n + j, b + 4 + j, b + j, SW))
e("s_not_b64 vcc, vcc")
for n, b in enumerate((HI, HI + 8)):
    for j in range(4): e("v_cndmask_b32_dpp v%d, v%d, v%d, vcc %s" % (ACC + 8 * n + 4 + j, b + j, b + 4 + j, SW))
HI = ACC
e("s_nop 1")
for b in (HI, HI + 8):
    for j in range(4): e("v_permlane32_swap_b32 v%d, v%d" % (b + j, b + 4 + j))
def mf(d, a, b, c):
    e("v_mfma_f32_32x32x16_bf16 v[%d:%d], v[%d:%d], v[%d:%d], %s" % (d, d + 15, a, a + 3, b, b + 3, c if c == "0" else "v[%d:%d]" % (c, c + 15)))
for h in range(2):
    e("s_nop 1")
    mf(DD, W, HI + 4 * h, "0"); mf(G, W + 8, RBF + 4 * h, "0")
    mf(DD, W + 4, HI + 8 + 4 * h, DD)
    mf(U, W + 16, RBF + 4 * h, "0")
    e("s_nop 11")
    for j in range(4):
        e("v_pk_mul_f32 v[%d:%d], v[%d:%d], v[%d:%d]" % (G + 2 * j, G + 2 * j + 1, G + 2 * j, G + 2 * j + 1, DD + 2 * j, DD + 2 * j + 1))
    for j in range(4):
        e("v_pk_fma_f32 v[%d:%d], v[%d:%d], v[%d:%d], v[%d:%d]" % (G + 2 * j, G + 2 * j + 1, G + 8 + 2 * j, G + 9 + 2 * j, DD + 8 + 2 * j, DD + 9 + 2 * j, G + 2 * j, G + 2 * j + 1))
    for j in range(4): e("v_cvt_pk_bf16_f32 v%d, v%d, v%d" % (DD + j, G + 2 * j, G + 2 * j + 1))
    e("s_nop 1")
    mf(U, W + 12, DD, U)
    for j in range(4):
        m = MM + 4 * h + j
        e("v_lshlrev_b32 v%d, 16, v%d" % (G + 2 * j, m)); e("v_and_b32 v%d, s52, v%d" % (G + 2 * j + 1, m))
    e("s_nop 7")
    for j in range(4):
        e("v_pk_fma_f32 v[%d:%d], v[%d:%d], v[%d:%d], v[%d:%d]" % (G + 2 * j, G + 2 * j + 1, U + 2 * j, U + 2 * j + 1, U + 8 + 2 * j, U + 9 + 2 * j, G + 2 * j, G + 2 * j + 1))
    for j in range(4): e("v_cvt_pk_bf16_f32 v%d, v%d, v%d" % (MM + 4 * h + j, G + 2 * j, G + 2 * j + 1))
    e("buffer_store_dwordx4 v[%d:%d], v%d, s[32:35], s39 offen %s" % (MM + 4 * h, MM + 4 * h + 3, OA + h, P.get("OS", "")))
stamp(6); stamp_out(1, 24, 3, 5)
e("G_EXIT:"); e("s_endpgm")
e('.section .rodata,"a"')
for n, nv in (("part_kernel", 140), ("gath_kernel", NV2)):
    nv = (nv + 3) // 4 * 4
    e(".p2align 6"); e(".amdhsa_kernel %s" % n)
    e("  .amdhsa_next_free_vgpr %d" % nv); e("  .amdhsa_next_free_sgpr 80"); e("  .amdhsa_accum_offset %d" % nv)
    e("  .amdhsa_group_segment_fixed_size 0"); e("  .amdhsa_kernarg_size 112"); e("  .amdhsa_user_sgpr_count 2")
    e("  .amdhsa_user_sgpr_kernarg_segment_ptr 1"); e("  .amdhsa_system_sgpr_workgroup_id_x 1"); e(".end_amdhsa_kernel")
open(sys.argv[1], "w").write("\n".join(out) + "\n")
```
